```python
import torch

def _softmax(x, axis=-1):
    return torch.softmax(x, dim=axis)

def _gelu(x):
    return torch.nn.functional.gelu(x, approximate='tanh')

def _silu(x):
    return torch.nn.functional.silu(x)

def _sigmoid(x):
    return torch.sigmoid(x)

def _layernorm(x, axis=-1, eps=1e-05):
    m = x.mean(dim=axis, keepdim=True)
    v = x.var(dim=axis, keepdim=True, unbiased=False)
    return (x - m) / torch.sqrt(v + eps)

def _scatter_add(tgt, idx, src, axis=0):
    return tgt.clone().index_add_(axis, idx, src)

def _segment_sum(src, seg, n):
    out = torch.zeros((n,) + src.shape[1:], dtype=src.dtype)
    return out.index_add_(0, seg, src)

def _pad(x, pw):
    flat = tuple((v for pair in reversed(pw) for v in pair))
    return torch.nn.functional.pad(x, flat)
kernel_name = 'gather_scatter__tensor_product_equiv_mace__graph'

def setup_inputs():

    _w = lambda a: (lambda t: t.to(torch.bfloat16) if t.is_floating_point() else t)(torch.as_tensor(a))
    N, deg = (10000, 64)
    Lmax, C, De = (1, 64, 4)
    M = (Lmax + 1) ** 2
    E = N * deg
    src = (lambda lo, hi, *s: torch.randint(lo, hi, s))(0, N, E).to(torch.int64)
    dst = (lambda lo, hi, *s: torch.randint(lo, hi, s))(0, N, E).to(torch.int64)
    r = (lambda *s: torch.randn(*s, dtype=torch.bfloat16) * 0.05)(E, 3).to(float)
    r = r / (torch.linalg.norm(r, dim=-1, keepdim=True).to(float) + 1e-06)
    rx, ry, rz = (r[:, 0].clone(), r[:, 1].clone(), r[:, 2].clone())
    x2, y2, z2 = (rx * rx, ry * ry, rz * rz)
    sh_list = [torch.ones_like(rx), rx, ry, rz, rx * ry, ry * rz, 2.0 * z2 - x2 - y2, rx * rz, x2 - y2, ry * (3.0 * x2 - y2), rx * ry * rz, ry * (4.0 * z2 - x2 - y2), rz * (2.0 * z2 - 3.0 * x2 - 3.0 * y2), rx * (4.0 * z2 - x2 - y2), rz * (x2 - y2), rx * (x2 - 3.0 * y2)]
    sh16 = torch.stack(sh_list, dim=-1).to(float)
    pad = max(0, M - 16)
    sh_full = torch.cat([sh16, torch.zeros((E, pad), dtype=float)], dim=-1)[:, :M]
    cg = ((lambda *s: torch.randn(*s, dtype=torch.bfloat16) * 0.05)(M, M, M) * (1.0 / float(M))).to(float)
    return {'x': _w(((lambda *s: torch.randn(*s, dtype=torch.bfloat16) * 0.05)(N, M, C) * 0.3).to(float)), 'src': _w(src), 'dst': _w(dst), 'sh': _w(sh_full.to(float)), 'edge_attr': _w(((lambda *s: torch.randn(*s, dtype=torch.bfloat16) * 0.05)(E, De) * 0.3).to(float)), 'cg': _w(cg), 'w_r': _w(((lambda *s: torch.randn(*s, dtype=torch.bfloat16) * 0.05)(De, C) * (1.0 / float(De) ** 0.5)).to(float)), 'w_out': _w(((lambda *s: torch.randn(*s, dtype=torch.bfloat16) * 0.05)(C, C) * (1.0 / float(C) ** 0.5)).to(float))}

def reference(x, src, dst, sh, edge_attr, cg, w_r, w_out):
    N = x.shape[0]
    M = x.shape[1]
    C = x.shape[2]
    h = x[src]
    tp = torch.einsum('uvw,euc,ev->ewc', cg, h, sh)
    rw = edge_attr @ w_r
    msg = tp * rw[:, None, :]
    msg2 = msg.reshape(-1, M * C)
    agg = _segment_sum(msg2, dst, N).reshape(N, M, C)
    out = torch.einsum('nmc,cd->nmd', agg, w_out)
    return out
```

```python
class Regs:
    def __init__(self, prefix, start=0, limit=256):
        self.p = prefix; self.n = start; self.limit = limit; self.hi = start
    def alloc(self, cnt=1, align=1):
        self.n = (self.n + align - 1) // align * align
        r = R(self.p, self.n, cnt); self.n += cnt
        assert self.n <= self.limit, f"out of {self.p} registers"
        self.hi = max(self.hi, self.n)
        return r
    def mark(self): return self.n
    def reset(self, m): self.n = m

class R:
    def __init__(self, p, i, cnt): self.p = p; self.i = i; self.cnt = cnt
    def __getitem__(self, k):
        if isinstance(k, slice):
            a = k.start or 0; b = k.stop if k.stop is not None else self.cnt
            assert 0 <= a < b <= self.cnt, (a, b, self.cnt)
            return R(self.p, self.i + a, b - a)
        assert 0 <= k < self.cnt
        return R(self.p, self.i + k, 1)
    def __str__(self):
        return f"{self.p}{self.i}" if self.cnt == 1 else f"{self.p}[{self.i}:{self.i + self.cnt - 1}]"
    __format__ = lambda self, spec: str(self)

class Asm:
    def __init__(self): self.L = []
    def __call__(self, s):
        for line in s.split("\n"):
            line = line.strip()
            if not line: continue
            self.L.append(line if line.endswith(":") or line.startswith(".") else "    " + line)
    def c(self, s): self.L.append("    ; " + s)
    def text(self): return "\n".join(self.L) + "\n"

def kd(name, nv, ns):
    return f""".section .rodata,"a"
.p2align 6
.amdhsa_kernel {name}
  .amdhsa_next_free_vgpr {nv}
  .amdhsa_next_free_sgpr {ns}
  .amdhsa_accum_offset {(nv + 3) // 4 * 4}
  .amdhsa_group_segment_fixed_size 0
  .amdhsa_kernarg_size 88
  .amdhsa_user_sgpr_count 2
  .amdhsa_user_sgpr_kernarg_segment_ptr 1
  .amdhsa_system_sgpr_workgroup_id_x 1
  .amdhsa_float_denorm_mode_32 3
.end_amdhsa_kernel
.text
"""

def srd(A, d, base, nbytes):
    A(f"s_mov_b32 {d[0]}, {base[0]}")
    A(f"s_and_b32 {d[1]}, {base[1]}, 0xffff")
    A(f"s_mov_b32 {d[2]}, {nbytes}")
    A(f"s_mov_b32 {d[3]}, 0x20000")

def scan64(A, v):
    for m in ("row_shr:1", "row_shr:2", "row_shr:4", "row_shr:8"):
        A("s_nop 1")
        A(f"v_add_u32_dpp {v}, {v}, {v} {m} row_mask:0xf bank_mask:0xf")
    A("s_nop 1")
    A(f"v_add_u32_dpp {v}, {v}, {v} row_bcast:15 row_mask:0xa bank_mask:0xf")
    A("s_nop 1")
    A(f"v_add_u32_dpp {v}, {v}, {v} row_bcast:31 row_mask:0xc bank_mask:0xf")
```

```python
import sys
from asmlib import *

N = 10000; E = 640000; CH = 2500
REG = 53248
TAB = 256 * REG
WSB = TAB + 256 * 1024
MAGIC = 429497
TSB = 0x1000000

class Stamps:
    def __init__(self, A, S, on, which, n=9):
        self.A = A; self.on = on; self.k = 0; self.which = which; self.n = n
        if on: self.r = S.alloc(2 * n, 2)
    def __call__(self):
        if self.on:
            self.A(f"s_memrealtime {self.r[2*self.k:2*self.k+2]}")
            self.k += 1
    def init(self, ws):
        self.ws = ws
        if self.on:
            for i in range(2, 2 * self.n, 2): self.A(f"s_mov_b32 {self.r[i]}, 0")
    def flush(self, vt, swave, d):
        if not self.on: return
        A = self.A
        A("s_waitcnt lgkmcnt(0)")
        srd(A, d, self.ws, 0x10000000)
        A("s_mov_b64 exec, 1")
        A(f"s_lshl_b32 s3, s2, 4")
        A(f"s_add_u32 s3, s3, {swave}")
        A(f"s_lshl_b32 s3, s3, 6")
        A(f"s_add_u32 s3, s3, {TSB + self.which * 0x100000}")
        for i in range(12):
            A(f"v_mov_b32 {vt}, {self.r[2*i] if i < self.n else 0}")
            A(f"buffer_store_dword {vt}, off, {d}, s3 offset:{4*i}")
            A("s_nop 1")

def gen_k1(o):
    name = "part_kernel"
    A = Asm(); V = Regs("v", 1, 128); S = Regs("s", 4, 100)
    STAGE = 0; CNT = REG; ENT = CNT + 1024; UW = ENT + 1024; LDS = UW + 16
    ldp = o.get('k1_ld', 'nt'); stp = o.get('k1_st', '')
    A(f".globl {name}\n.p2align 8\n.type {name},@function\n{name}:")
    sP = S.alloc(16, 4); sWS = S.alloc(2, 2)
    sX, sSrc, sDst, sSh, sEa = sP[0:2], sP[2:4], sP[4:6], sP[6:8], sP[8:10]
    rOut = S.alloc(4, 4); rTab = S.alloc(4, 4); rX = S.alloc(4, 4)
    sAct = S.alloc(2, 2); sM = S.alloc(); s625 = S.alloc(); sT = S.alloc(); sWave = S.alloc(); s16 = S.alloc()
    ts = Stamps(A, S, o.get('ts'), 0)
    A("s_cmp_ge_u32 s2, 256")
    A("s_cbranch_scc1 K1_end")
    ts()
    A(f"s_load_dwordx16 {sP}, s[0:1], 0")
    A(f"s_load_dwordx2 {sWS}, s[0:1], 80")
    vo4 = V.alloc(2); vo8 = V.alloc(2); vt = V.alloc(4, 2); vOne = V.alloc()
    vD = V.alloc(4, 2); vS = V.alloc(4, 2); vSh = V.alloc(8, 2); vEa = V.alloc(8, 2)
    vC = V.alloc(4); vRk = V.alloc(4); vKey = V.alloc(4); vEnt = V.alloc(4); vPf = V.alloc(2)
    A.c("zero the bin counters")
    A(f"v_lshlrev_b32 {vt[0]}, 2, v0")
    A(f"v_mov_b32 {vt[1]}, 0")
    A(f"v_cmp_gt_u32 vcc, 256, v0")
    A(f"s_and_saveexec_b64 {sAct}, vcc")
    A(f"ds_write_b32 {vt[0]}, {vt[1]} offset:{CNT}")
    A(f"s_mov_b64 exec, {sAct}")
    A(f"v_lshrrev_b32 {vt[2]}, 6, v0")
    A(f"s_mul_i32 {sT}, s2, {CH*4}")
    A(f"v_readfirstlane_b32 {sWave}, {vt[2]}")
    A(f"v_lshl_add_u32 {vo4[0]}, v0, 3, {sT}")
    A(f"v_add_u32 {vo4[1]}, {CH*2}, {vo4[0]}")
    A(f"v_lshlrev_b32 {vo8[0]}, 1, {vo4[0]}")
    A(f"v_lshlrev_b32 {vo8[1]}, 1, {vo4[1]}")
    A(f"v_mov_b32 {vOne}, 4")
    A(f"s_mov_b32 {sM}, {MAGIC}")
    A(f"s_movk_i32 {s625}, 625")
    A(f"s_movk_i32 {s16}, 16")
    A(f"v_cmp_gt_u32 vcc, {CH//4}, v0")
    A(f"s_waitcnt lgkmcnt(0)")
    A(f"s_mov_b64 {sAct}, vcc")
    A(f"s_mov_b64 exec, vcc")
    A(f"global_load_dwordx2 {vD[0:2]}, {vo4[0]}, {sDst} {ldp}")
    A(f"global_load_dwordx2 {vD[2:4]}, {vo4[1]}, {sDst} {ldp}")
    A(f"global_load_dwordx2 {vS[0:2]}, {vo4[0]}, {sSrc} {ldp}")
    A(f"global_load_dwordx2 {vS[2:4]}, {vo4[1]}, {sSrc} {ldp}")
    A(f"global_load_dwordx4 {vSh[0:4]}, {vo8[0]}, {sSh} {ldp}")
    A(f"global_load_dwordx4 {vEa[0:4]}, {vo8[0]}, {sEa} {ldp}")
    A(f"global_load_dwordx4 {vSh[4:8]}, {vo8[1]}, {sSh} {ldp}")
    A(f"global_load_dwordx4 {vEa[4:8]}, {vo8[1]}, {sEa} {ldp}")
    A("s_mov_b64 exec, -1")
    ts.init(sWS)
    A(f"s_mul_i32 {sT}, s2, {REG}")
    A(f"s_add_u32 {rOut[0]}, {sWS[0]}, {sT}")
    A(f"s_addc_u32 {rOut[1]}, {sWS[1]}, 0")
    A(f"s_and_b32 {rOut[1]}, {rOut[1]}, 0xffff")
    A(f"s_mov_b32 {rOut[2]}, 0")
    A(f"s_mov_b32 {rOut[3]}, 0x20000")
    srd(A, rTab, sWS, WSB)
    npf = 0
    pf = o.get('pf', 0.0)
    if pf > 0:
        A.c("touch the leading part of x so that it is in this die's L2 when the gather starts (speed only)")
        lines = int(pf * 40000) // 32
        srd(A, rX, sX, N * 512)
        A(f"s_lshr_b32 {sT}, s2, 3")
        A(f"s_mul_i32 {sT}, {sT}, {lines*128}")
        A(f"v_lshlrev_b32 {vt[0]}, 7, v0")
        for k in range((lines + 639) // 640):
            rem = lines - 640 * k
            if rem < 640:
                A(f"v_cmp_gt_u32 vcc, {rem}, v0")
                A(f"s_or_b64 exec, vcc, 1")
            A(f"buffer_load_dword {vPf[0]}, {vt[0]}, {rX}, {sT} offen")
            A(f"s_add_u32 {sT}, {sT}, {640*128}")
            npf += 1
        A("s_mov_b64 exec, -1")
        rest = 40000 - lines * 32
        if rest > 0 and o.get('pfrest', 1):
            per = (rest + 255) // 256
            A(f"s_mul_i32 {sT}, s2, {per*128}")
            A(f"s_add_u32 {sT}, {sT}, {lines*32*128}")
            A(f"v_cmp_gt_u32 vcc, {per}, v0")
            A(f"s_or_b64 exec, vcc, 1")
            A(f"buffer_load_dword {vPf[1]}, {vt[0]}, {rX}, {sT} offen nt")
            A("s_mov_b64 exec, -1")
            npf += 1
    A("s_barrier")
    A(f"s_mov_b64 exec, {sAct}")
    A(f"s_waitcnt vmcnt({6 + npf})")
    ts()
    for e in range(4):
        A(f"v_mul_u32_u24 {vt[0]}, {sM}, {vD[e]}")
        A(f"v_lshlrev_b32_sdwa {vC[e]}, 2, {vt[0]} dst_sel:DWORD dst_unused:UNUSED_PAD src0_sel:DWORD src1_sel:BYTE_3")
        A(f"ds_add_rtn_u32 {vRk[e]}, {vC[e]}, {vOne} offset:{CNT}")
    for e in range(4):
        A(f"v_mad_u32_u24 {vt[0]}, {vC[e]}, {s625}, 60")
        A(f"v_lshrrev_b32 {vt[0]}, 6, {vt[0]}")
        A(f"v_sub_u32 {vD[e]}, {vD[e]}, {vt[0]}")
    A(f"s_waitcnt lgkmcnt(0)")
    A("s_barrier")
    ts()
    A("s_mov_b64 exec, -1")
    A(f"s_cmp_lg_u32 {sWave}, 9")
    A("s_cbranch_scc1 K1_noscan")
    A.c("wave 9: run sizes (payload units + key units), exclusive scan, entries {first unit, first key unit}")
    m = V.mark()
    vc = V.alloc(4, 2); vz = V.alloc(4); vi = V.alloc(); vl = V.alloc(); ve = V.alloc(4, 2); vg = V.alloc(4, 2)
    A(f"v_and_b32 {vl}, 63, v0")
    A(f"v_lshlrev_b32 {vl}, 4, {vl}")
    A(f"ds_read_b128 {vc}, {vl} offset:{CNT}")
    A(f"s_lshl_b32 {sT}, s2, 10")
    A(f"s_add_u32 {sT}, {sT}, {TAB}")
    A("s_waitcnt lgkmcnt(0)")
    for i in range(4):
        A(f"v_add_u32 {vz[i]}, 12, {vc[i]}")
        A(f"v_lshrrev_b32 {vc[i]}, 2, {vc[i]}")
        A(f"v_lshrrev_b32 {vz[i]}, 4, {vz[i]}")
    A(f"v_add_u32 {vz[0]}, {vz[0]}, {vc[0]}")
    for i in range(1, 4):
        A(f"v_add3_u32 {vz[i]}, {vz[i]}, {vc[i]}, {vz[i-1]}")
    A(f"v_mov_b32 {vi}, {vz[3]}")
    scan64(A, vi)
    A(f"v_sub_u32 {ve[0]}, {vi}, {vz[3]}")
    for i in range(1, 4):
        A(f"v_add_u32 {ve[i]}, {ve[0]}, {vz[i-1]}")
    for i in range(4):
        A(f"v_add_u32 {vc[i]}, {vc[i]}, {ve[i]}")
        A(f"v_lshl_or_b32 {vg[i]}, {vc[i]}, 16, {ve[i]}")
    A(f"ds_write_b128 {vl}, {vg} offset:{ENT}")
    A(f"buffer_store_dwordx4 {vg}, {vl}, {rTab}, {sT} offen {stp}")
    A(f"s_mov_b64 exec, 0x8000000000000000" if False else f"s_mov_b32 exec_lo, 0\ns_mov_b32 exec_hi, 0x80000000")
    A(f"v_mov_b32 {vl}, 0")
    A(f"ds_write_b32 {vl}, {vi} offset:{UW}")
    A("s_mov_b64 exec, -1")
    A("s_waitcnt lgkmcnt(0)")
    V.reset(m)
    A("K1_noscan:")
    A(f"s_mov_b64 exec, {sAct}")
    A(f"s_waitcnt vmcnt({4 + npf})")
    for e in range(4):
        A(f"v_mul_u32_u24 {vt[0]}, {sM}, {vS[e]}")
        A(f"v_alignbit_b32 {vt[0]}, {vD[e]}, {vt[0]}, 30")
        A(f"v_lshl_or_b32 {vKey[e]}, {vS[e]}, 16, {vt[0]}")
    A("s_barrier")
    ts()
    for e in range(4):
        A(f"ds_read_b32 {vEnt[e]}, {vC[e]} offset:{ENT}")
    A(f"v_mov_b32 {vt[3]}, 0")
    A(f"ds_read_b32 {vt[3]}, {vt[3]} offset:{UW}")
    for e in range(4):
        A(f"s_waitcnt lgkmcnt({4 - e + e})")
        A(f"v_mad_u32_u16 {vt[0]}, {vEnt[e]}, {s16}, {vRk[e]} op_sel:[1,0,0,0]")
        A(f"ds_write_b32 {vt[0]}, {vKey[e]} offset:{STAGE}")
        A(f"v_lshlrev_b32 {vRk[e]}, 2, {vRk[e]}")
        A(f"v_mad_u32_u16 {vC[e]}, {vEnt[e]}, {s16}, {vRk[e]}")
    A(f"s_waitcnt vmcnt({2 + npf})")
    for e in range(2):
        A(f"ds_write2_b64 {vC[e]}, {vSh[2*e:2*e+2]}, {vEa[2*e:2*e+2]} offset0:0 offset1:1")
    A(f"s_waitcnt vmcnt({npf})")
    ts()
    for e in range(2, 4):
        A(f"ds_write2_b64 {vC[e]}, {vSh[2*e:2*e+2]}, {vEa[2*e:2*e+2]} offset0:0 offset1:1")
    A("s_waitcnt lgkmcnt(0)")
    A(f"v_readfirstlane_b32 {sT}, {vt[3]}")
    A("s_mov_b64 exec, -1")
    A(f"v_lshlrev_b32 {vt[0]}, 4, v0")
    A(f"s_lshl_b32 {rOut[2]}, {sT}, 4")
    A("s_barrier")
    ts()
    vO = V.alloc(24, 2)
    for k in range(5):
        A(f"ds_read_b128 {vO[4*k:4*k+4]}, {vt[0]} offset:{STAGE + k*10240}")
    A(f"s_cmp_gt_u32 {sWave}, 1")
    A("s_cbranch_scc1 K1_no6")
    A(f"ds_read_b128 {vO[20:24]}, {vt[0]} offset:{STAGE + 5*10240}")
    A(f"s_mov_b32 {sT}, {5*10240}")
    A("s_waitcnt lgkmcnt(0)")
    A(f"buffer_store_dwordx4 {vO[20:24]}, {vt[0]}, {rOut}, {sT} offen {stp}")
    A("K1_no6:")
    for k in range(5):
        A(f"s_mov_b32 {sT}, {k*10240}")
        A(f"s_waitcnt lgkmcnt({4-k})")
        A(f"buffer_store_dwordx4 {vO[4*k:4*k+4]}, {vt[0]}, {rOut}, {sT} offen {stp}")
    if o.get('ts'):
        ts()
        A("s_waitcnt vmcnt(0)")
        ts()
        ts.flush(vt[1], sWave, rTab)
    A("K1_end:")
    A("s_endpgm")
    return A.text() + kd(name, V.hi, S.hi), LDS

def gen_k2(o):
    name = "gather_scatter__tensor_product_equiv_mace__graph_kernel"
    A = Asm(); V = Regs("v", 1, 128); S = Regs("s", 4, 102)
    CAP = 3072
    CNT = 0; TBL = 1024; SEG = 3072; MISC = 3584; WOP = 4096; WRF = WOP + 8192; KEY = WRF + 4096
    PAY = KEY + CAP * 4 + 128; RING = PAY + CAP * 16 + 128; LDS = RING + 14 * 4224
    assert RING % 64 == 0 and PAY < 65536 - 256 and LDS <= 163840
    ldp = o.get('k2_ld', 'nt')
    A(f".globl {name}\n.p2align 8\n.type {name},@function\n{name}:")
    sXp = S.alloc(2, 2); sQ = S.alloc(8, 4); sWS = S.alloc(2, 2)
    sCg, sWr, sWo, sOut = sQ[0:2], sQ[2:4], sQ[4:6], sQ[6:8]
    rX = S.alloc(4, 4); rW = S.alloc(4, 4); rO = S.alloc(4, 4)
    sWave = S.alloc(); sBin = S.alloc(); sN0 = S.alloc(); sN1 = S.alloc(); sT = S.alloc(2, 2)
    sSlow = S.alloc(); sR = S.alloc(); sBase = S.alloc(); sMaxN = S.alloc()
    sCo = S.alloc(4); s16 = S.alloc(); s512 = S.alloc()
    sM0 = S.alloc(8, 2); sM1 = S.alloc(8, 2); sEn = S.alloc(2, 2); sAny1 = S.alloc(2, 2)
    sPk = S.alloc(3); sNxt = S.alloc(); sEnd0 = S.alloc(); sSt1 = S.alloc(); sRem = S.alloc(); sCnt = S.alloc(); sPh = S.alloc()
    sRing = S.alloc(4); sKo = S.alloc(); sPo = S.alloc()
    ts = Stamps(A, S, o.get('ts'), 1)
    A("s_cmp_ge_u32 s2, 256")
    A("s_cbranch_scc1 K2_end")
    ts()
    A(f"s_load_dwordx2 {sWS}, s[0:1], 80")
    A(f"s_load_dwordx2 {sXp}, s[0:1], 0")
    A(f"s_load_dwordx8 {sQ}, s[0:1], 40")
    vLane = V.alloc(); vCg = V.alloc(2, 2); vAcc = V.alloc(48, 4)
    mV = V.mark()
    vt = V.alloc(4, 2); vI = V.alloc(); vChunk = V.alloc(); vK0 = V.alloc(); vOne = V.alloc()
    vE = V.alloc(4); vKa = V.alloc(4, 2); vRk = V.alloc(8); vPa = vRk[0:4]
    vKey = V.alloc(8); vP = V.alloc(32, 2)
    A(f"v_lshrrev_b32 {vt[0]}, 6, v0")
    A(f"v_and_b32 {vLane}, 63, v0")
    A(f"v_readfirstlane_b32 {sWave}, {vt[0]}")
    A(f"s_and_b32 {sBin}, s2, 7")
    A(f"s_lshl_b32 {sBin}, {sBin}, 5")
    A(f"s_lshr_b32 {sT[0]}, s2, 3")
    A(f"s_add_u32 {sBin}, {sBin}, {sT[0]}")
    A(f"s_mul_i32 {sN0}, {sBin}, 625")
    A(f"s_add_u32 {sN1}, {sN0}, {625+15}")
    A(f"s_add_u32 {sN0}, {sN0}, 15")
    A(f"s_lshr_b32 {sN0}, {sN0}, 4")
    A(f"s_lshr_b32 {sN1}, {sN1}, 4")
    A(f"s_mov_b32 {sSlow}, 0")
    A(f"s_mov_b32 {sR}, 0")
    A(f"s_mov_b32 {sBase}, 0")
    A(f"s_mov_b32 {sMaxN}, 0")
    A(f"s_movk_i32 {s16}, 16")
    A(f"s_movk_i32 {s512}, 512")
    for r in range(4): A(f"s_mov_b32 {sCo[r]}, {r*64*REG}")
    A(f"s_mul_i32 {sRing[0]}, {sWave}, 4224")
    A(f"s_add_u32 {sRing[0]}, {sRing[0]}, {RING}")
    for k in range(1, 4): A(f"s_add_u32 {sRing[k]}, {sRing[0]}, {1056*k}")
    for i in range(0, 48, 2): A(f"v_mov_b64 {vAcc[i:i+2]}, 0")
    A("s_waitcnt lgkmcnt(0)")
    srd(A, rW, sWS, WSB); srd(A, rX, sXp, N * 512); srd(A, rO, sOut, N * 512)
    ts.init(sWS)
    A("K2_round:")
    A.c("run table entries of this bin: lane group q = tid>>4 reads chunks q+64r")
    A(f"v_lshrrev_b32 {vChunk}, 4, v0")
    A(f"s_lshl_b32 {sT[0]}, {sBin}, 2")
    A(f"s_add_u32 {sT[0]}, {sT[0]}, {TAB}")
    A(f"v_lshl_add_u32 {vt[0]}, {vChunk}, 10, {sT[0]}")
    for r in range(4):
        A(f"s_mov_b32 {sT[1]}, {r*65536}")
        A(f"buffer_load_dword {vE[r]}, {vt[0]}, {rW}, {sT[1]} offen")
    A.c("constants (first round only)")
    A(f"s_cmp_lg_u32 {sSlow}, 0")
    A("s_cbranch_scc1 K2_noconst")
    A(f"v_and_b32 {vt[0]}, 3, v0")
    A(f"v_bfe_u32 {vt[1]}, v0, 2, 2")
    A(f"v_lshlrev_b32 {vt[2]}, 5, {vt[0]}")
    A(f"v_lshl_add_u32 {vt[2]}, {vt[1]}, 1, {vt[2]}")
    A(f"global_load_ushort {vCg[0]}, {vt[2]}, {sCg}")
    A(f"global_load_ushort {vKey[0]}, {vt[2]}, {sCg} offset:8")
    A(f"global_load_ushort {vCg[1]}, {vt[2]}, {sCg} offset:16")
    A(f"global_load_ushort {vKey[1]}, {vt[2]}, {sCg} offset:24")
    A(f"v_bfe_u32 {vt[1]}, v0, 4, 2")
    A(f"s_cmp_lt_u32 {sWave}, 13")
    A("s_cbranch_scc1 K2_now")
    A(f"s_cmp_gt_u32 {sWave}, 13")
    A("s_cbranch_scc1 K2_wout")
    A.c("wave 13: w_r as f32 in LDS, lane (g,w,k): wr[k][16t+4g+r]")
    A(f"v_lshlrev_b32 {vt[2]}, 7, {vt[0]}")
    A(f"v_lshl_add_u32 {vt[2]}, {vt[1]}, 3, {vt[2]}")
    for t in range(4):
        A(f"global_load_dwordx2 {vP[2*t:2*t+2]}, {vt[2]}, {sWr} offset:{32*t}")
    A(f"v_lshlrev_b32 {vt[0]}, 4, {vLane}")
    A("s_waitcnt vmcnt(0)")
    for t in range(4):
        for i in range(2):
            A(f"v_lshlrev_b32 {vP[16+4*t+2*i]}, 16, {vP[2*t+i]}")
            A(f"v_and_b32 {vP[16+4*t+2*i+1]}, 0xffff0000, {vP[2*t+i]}")
        A(f"ds_write_b128 {vt[0]}, {vP[16+4*t:20+4*t]} offset:{WRF + 1024*t}")
    A("s_branch K2_now")
    A("K2_wout:")
    A.c("waves 14,15: w_out as MFMA B operands in LDS. K-step s = wave-14; lane (g,n): W[32s+16(j>>2)+4g+(j&3)][4n+tau]")
    A(f"s_sub_u32 {sT[0]}, {sWave}, 14")
    A(f"s_lshl_b32 {sT[1]}, {sT[0]}, 12")
    A(f"v_and_b32 {vt[0]}, 15, v0")
    A(f"v_lshlrev_b32 {vt[0]}, 3, {vt[0]}")
    A(f"v_lshl_add_u32 {vt[0]}, {vt[1]}, 9, {vt[0]}")
    A(f"v_add_u32 {vt[0]}, {sT[1]}, {vt[0]}")
    for j in range(8):
        A(f"global_load_dwordx2 {vP[2*j:2*j+2]}, {vt[0]}, {sWo} offset:{2048*(j>>2) + 128*(j&3)}")
    A(f"v_lshl_add_u32 {vt[0]}, {vLane}, 4, {sT[1]}")
    A(f"s_mov_b32 {sT[0]}, 0x05040100")
    A(f"s_mov_b32 {sT[1]}, 0x07060302")
    A("s_waitcnt vmcnt(0)")
    for tau in range(4):
        for jj in range(4):
            A(f"v_perm_b32 {vP[16+4*tau+jj]}, {vP[2*(2*jj+1) + (tau>>1)]}, {vP[2*(2*jj) + (tau>>1)]}, {sT[tau&1]}")
        A(f"ds_write_b128 {vt[0]}, {vP[16+4*tau:20+4*tau]} offset:{WOP + 1024*tau}")
    A("K2_now:")
    A("K2_noconst:")
    A.c("LDS init: counters/flags 0, keys = out-of-range marker, payload 0")
    A(f"v_mov_b64 {vP[0:2]}, 0")
    A(f"v_mov_b64 {vP[2:4]}, 0")
    A(f"v_mov_b64 {vP[4:6]}, -1")
    A(f"v_mov_b64 {vP[6:8]}, -1")
    A(f"v_lshlrev_b32 {vt[0]}, 4, v0")
    for k in range(3):
        A(f"ds_write_b128 {vt[0]}, {vP[0:4]} offset:{PAY + 16384*k}")
    A(f"v_lshlrev_b32 {vt[1]}, 2, v0")
    A(f"ds_write_b32 {vt[1]}, {vP[0]} offset:{CNT}")
    A(f"v_cmp_gt_u32 vcc, {(CAP*4+128)//16}, v0")
    A(f"s_and_saveexec_b64 {sEn}, vcc")
    A(f"ds_write_b128 {vt[0]}, {vP[4:8]} offset:{KEY}")
    A(f"s_mov_b64 exec, {sEn}")
    A(f"v_and_b32 {vI}, 15, v0")
    A(f"v_add_u32 {vI}, {sBase}, {vI}")
    A(f"s_mov_b32 {sT[0]}, {REG}")
    A(f"v_mul_u32_u24 {vChunk}, {sT[0]}, {vChunk}")
    A(f"v_lshl_add_u32 {vK0}, {vI}, 2, {vChunk}")
    A(f"v_mov_b32 {vOne}, 1")
    A("s_waitcnt lgkmcnt(0)")
    A("s_barrier")
    A("s_waitcnt vmcnt(0)")
    ts()
    A(f"s_cmp_lg_u32 {sSlow}, 0")
    A("s_cbranch_scc1 K2_nocg")
    A(f"v_lshl_or_b32 {vCg[0]}, {vKey[0]}, 16, {vCg[0]}")
    A(f"v_lshl_or_b32 {vCg[1]}, {vKey[1]}, 16, {vCg[1]}")
    A("K2_nocg:")
    A(f"s_mov_b64 {sAny1}, 0")
    for r in range(4):
        A(f"s_cmp_eq_u32 {sR}, {r}")
        A(f"s_cselect_b64 {sEn}, -1, 0")
        A(f"s_cmp_eq_u32 {sSlow}, 0")
        A(f"s_cselect_b64 {sEn}, -1, {sEn}")
        A(f"v_add_u32_sdwa {vt[0]}, {vI}, {vE[r]} dst_sel:DWORD dst_unused:UNUSED_PAD src0_sel:DWORD src1_sel:WORD_0")
        A(f"v_mad_u32_u16 {vKa[r]}, {vE[r]}, {s16}, {vK0} op_sel:[1,0,0,0]")
        A(f"v_cmp_lt_u32_sdwa vcc, {vt[0]}, {vE[r]} src0_sel:DWORD src1_sel:WORD_1")
        A(f"v_lshl_add_u32 {vPa[r]}, {vt[0]}, 4, {vChunk}")
        A(f"s_and_b64 {sM0[2*r:2*r+2]}, vcc, {sEn}")
        A(f"v_add_u32 {vt[0]}, 16, {vt[0]}")
        A(f"v_cmp_lt_u32_sdwa vcc, {vt[0]}, {vE[r]} src0_sel:DWORD src1_sel:WORD_1")
        A(f"s_or_b64 exec, {sM0[2*r:2*r+2]}, 1")
        A(f"buffer_load_dword {vKey[r]}, {vKa[r]}, {rW}, {sCo[r]} offen {ldp}")
        A(f"s_and_b64 {sM1[2*r:2*r+2]}, vcc, {sEn}")
        A(f"s_or_b64 {sAny1}, {sAny1}, {sM1[2*r:2*r+2]}")
        A("s_mov_b64 exec, -1")
    A(f"s_cmp_eq_u64 {sAny1}, 0")
    A("s_cbranch_scc1 K2_noh1")
    for r in range(4):
        A(f"s_mov_b64 exec, {sM1[2*r:2*r+2]}")
        A(f"s_cbranch_execz K2_noh1_{r}")
        A(f"buffer_load_dword {vKey[4+r]}, {vKa[r]}, {rW}, {sCo[r]} offen offset:64 {ldp}")
        A(f"buffer_load_dwordx4 {vP[16+4*r:20+4*r]}, {vPa[r]}, {rW}, {sCo[r]} offen offset:256 {ldp}")
        A(f"K2_noh1_{r}:")
    A("K2_noh1:")
    for r in range(4):
        A(f"s_or_b64 exec, {sM0[2*r:2*r+2]}, 1")
        A(f"buffer_load_dwordx4 {vP[4*r:4*r+4]}, {vPa[r]}, {rW}, {sCo[r]} offen {ldp}")
    A("s_waitcnt vmcnt(4)")
    ts()
    def byte0(dst, sh, src):
        A(f"v_lshlrev_b32_sdwa {dst}, {sh}, {src} dst_sel:DWORD dst_unused:UNUSED_PAD src0_sel:DWORD src1_sel:BYTE_0")
    for r in range(4):
        A(f"s_mov_b64 exec, {sM0[2*r:2*r+2]}")
        byte0(vt[r], 2, vKey[r])
        A(f"ds_add_rtn_u32 {vRk[r]}, {vt[r]}, {vOne} offset:{CNT}")
    A(f"s_cmp_eq_u64 {sAny1}, 0")
    A("s_cbranch_scc1 K2_noh1b")
    for r in range(4):
        A(f"s_mov_b64 exec, {sM1[2*r:2*r+2]}")
        byte0(vt[r], 2, vKey[4+r])
        A(f"ds_add_rtn_u32 {vRk[4+r]}, {vt[r]}, {vOne} offset:{CNT}")
    A.c("a run with 32 or more records: leave the one-round path")
    A(f"s_and_b32 {sT[0]}, {sAny1[0]}, 0x80008000")
    A(f"s_and_b32 {sT[1]}, {sAny1[1]}, 0x80008000")
    A(f"s_mov_b64 exec, {sT}")
    A(f"v_mov_b32 {vt[0]}, 0")
    A(f"ds_write_b32 {vt[0]}, {vOne} offset:{MISC}")
    A("K2_noh1b:")
    A("s_mov_b64 exec, -1")
    A("s_waitcnt lgkmcnt(0)")
    A("s_barrier")
    ts()
    A(f"s_cmp_lg_u32 {sWave}, 15")
    A("s_cbranch_scc1 K2_noscan")
    A.c("wave 15: lane = node. counts -> 8-edge steps per phase -> positions")
    vc = vKa; vw = V.alloc(8, 2)
    assert vc.i % 2 == 0
    A(f"v_lshlrev_b32 {vt[0]}, 4, {vLane}")
    A(f"ds_read_b128 {vc}, {vt[0]} offset:{CNT}")
    A("s_waitcnt lgkmcnt(0)")
    A(f"v_add_u32 {vc[1]}, {vc[0]}, {vc[1]}")
    A(f"v_add_u32 {vc[2]}, {vc[1]}, {vc[2]}")
    A(f"v_add3_u32 {vc[3]}, {vc[2]}, {vc[3]}, 7")
    A(f"v_lshrrev_b32 {vc[3]}, 3, {vc[3]}")
    A(f"v_add_u32 {vt[1]}, 4, {vc[1]}")
    A(f"v_lshrrev_b32 {vt[1]}, 3, {vt[1]}")
    A(f"v_sub_u32 {vc[3]}, {vc[3]}, {vt[1]}")
    A(f"v_lshl_or_b32 {vt[3]}, {vc[3]}, 16, {vt[1]}")
    A(f"v_mov_b32 {vt[2]}, {vt[3]}")
    scan64(A, vt[2])
    A("s_nop 0")
    A(f"v_readlane_b32 {sT[0]}, {vt[2]}, 63")
    A(f"v_sub_u32 {vt[2]}, {vt[2]}, {vt[3]}")
    A(f"s_lshl_b32 {sT[1]}, {sT[0]}, 16")
    A(f"v_add_u32 {vt[2]}, {sT[1]}, {vt[2]}")
    A(f"v_lshlrev_b32 {vt[0]}, 3, {vLane}")
    A(f"ds_write_b64 {vt[0]}, {vt[2:4]} offset:{SEG}")
    A(f"v_and_b32 {vw[0]}, 0xffff, {vt[2]}")
    A(f"v_add_u32 {vt[1]}, {vw[0]}, {vt[1]}")
    A(f"v_lshrrev_b32 {vw[1]}, 16, {vt[2]}")
    A(f"v_sub_u32 {vw[1]}, {vw[1]}, {vt[1]}")
    A(f"v_lshl_or_b32 {vw[1]}, {vw[1]}, 16, {vt[1]}")
    A(f"v_lshlrev_b32 {vw[1]}, 3, {vw[1]}")
    A(f"v_lshlrev_b32 {vw[0]}, 3, {vw[0]}")
    for i in range(1, 4):
        A(f"v_add_u32 {vw[2*i]}, {vw[0]}, {vc[i-1]}")
        A(f"v_mov_b32 {vw[2*i+1]}, {vw[1]}")
    A(f"v_lshlrev_b32 {vt[0]}, 5, {vLane}")
    A(f"ds_write_b128 {vt[0]}, {vw[0:4]} offset:{TBL}")
    A(f"ds_write_b128 {vt[0]}, {vw[4:8]} offset:{TBL+16}")
    A(f"s_lshr_b32 {sT[1]}, {sT[0]}, 16")
    A(f"s_and_b32 {sT[0]}, {sT[0]}, 0xffff")
    A(f"s_add_u32 {sT[0]}, {sT[0]}, {sT[1]}")
    A(f"s_cmp_le_u32 {sT[0]}, {CAP//8}")
    A("s_cbranch_scc1 K2_fits")
    A(f"v_mov_b32 {vt[0]}, 0")
    A(f"ds_write_b32 {vt[0]}, {vOne} offset:{MISC}")
    A("K2_fits:")
    A("s_waitcnt lgkmcnt(0)")
    A("K2_noscan:")
    A("s_barrier")
    ts()
    vT = vw
    A(f"v_mov_b32 {vt[0]}, 0")
    A(f"ds_read_b32 {vt[0]}, {vt[0]} offset:{MISC}")
    A(f"s_mul_i32 {sT[0]}, {sWave}, 24")
    A(f"v_lshl_add_u32 {vt[1]}, {vLane}, 3, {sT[0]}")
    A(f"ds_read_b64 {vt[2:4]}, {vt[1]} offset:{SEG}")
    for r in range(4):
        byte0(vKa[r], 3, vKey[r])
        A(f"ds_read_b64 {vT[2*r:2*r+2]}, {vKa[r]} offset:{TBL}")
    A("s_waitcnt lgkmcnt(4)")
    A(f"v_readfirstlane_b32 {sT[0]}, {vt[0]}")
    A(f"v_readlane_b32 {sNxt}, {vt[2]}, 0")
    for a in range(3): A(f"v_readlane_b32 {sPk[a]}, {vt[3]}, {a}")
    A(f"s_cmp_gt_u32 {sT[0]}, {sSlow}")
    A("s_cbranch_scc1 K2_toslow")
    def place(r, key, rk, pay, msk, first):
        A(f"s_mov_b64 exec, {msk}")
        A(f"v_add_u32 {rk}, {rk}, {vT[2*r]}")
        A(f"v_cmp_ge_u32_sdwa vcc, {rk}, {vT[2*r+1]} src0_sel:DWORD src1_sel:WORD_0")
        A(f"v_lshrrev_b32 {vt[0]}, 16, {vT[2*r+1]}")
        A(f"s_nop 0")
        A(f"v_cndmask_b32 {vt[0]}, 0, {vt[0]}, vcc")
        A(f"v_add_lshl_u32 {rk}, {rk}, {vt[0]}, 2")
        A(f"ds_write_b32 {rk}, {key} offset:{KEY}")
        A(f"v_lshlrev_b32 {rk}, 2, {rk}")
    for r in range(4):
        A(f"s_waitcnt lgkmcnt({3-r})")
        place(r, vKey[r], vRk[r], None, sM0[2*r:2*r+2], True)
    A(f"s_cmp_eq_u64 {sAny1}, 0")
    A("s_cbranch_scc1 K2_noh1c")
    for r in range(4):
        A(f"s_mov_b64 exec, {sM1[2*r:2*r+2]}")
        A(f"s_cbranch_execz K2_noh1c_{r}")
        byte0(vt[1], 3, vKey[4+r])
        A(f"ds_read_b64 {vT[2*r:2*r+2]}, {vt[1]} offset:{TBL}")
        A("s_waitcnt lgkmcnt(0)")
        place(r, vKey[4+r], vRk[4+r], None, sM1[2*r:2*r+2], False)
        A(f"ds_write_b128 {vRk[4+r]}, {vP[16+4*r:20+4*r]} offset:{PAY}")
        A(f"K2_noh1c_{r}:")
    A("K2_noh1c:")
    for r in range(4):
        A(f"s_mov_b64 exec, {sM0[2*r:2*r+2]}")
        A(f"s_waitcnt vmcnt({3-r})")
        A(f"ds_write_b128 {vRk[r]}, {vP[4*r:4*r+4]} offset:{PAY}")
    A("s_mov_b64 exec, -1")
    hiP = V.n
    vEsave = vE
    V.reset(mV)
    vu = V.alloc(4, 2)
    vRow = V.alloc(); vTr = V.alloc(2); vKc = V.alloc(); vPc = V.alloc(); vEc = V.alloc()
    vKad = V.alloc(); vPad = V.alloc(); vEad = V.alloc()
    vK4 = V.alloc(4, 2); vAd = V.alloc(4); vX = V.alloc(16, 2); vSh = V.alloc(4, 2); vEa = V.alloc(2, 2); vCf = V.alloc(8, 2); vB = V.alloc(4, 2)
    A("s_waitcnt lgkmcnt(0)")
    A.c("lane constants of the main loop")
    A(f"v_and_b32 {vRow}, 31, v0")
    A(f"v_lshrrev_b32 {vu[0]}, 2, {vRow}")
    A(f"v_and_b32 {vu[0]}, 4, {vu[0]}")
    A(f"v_xor_b32 {vRow}, {vRow}, {vu[0]}")
    A(f"v_lshlrev_b32 {vRow}, 4, {vRow}")
    A(f"v_bfe_u32 {vu[0]}, v0, 4, 2")
    A(f"v_bfe_u32 {vu[1]}, v0, 2, 2")
    A(f"v_and_b32 {vu[2]}, 3, v0")
    A(f"v_mul_u32_u24 {vu[3]}, 1056, {vu[0]}")
    A(f"v_lshl_add_u32 {vu[3]}, {vu[1]}, 7, {vu[3]}")
    A(f"v_lshl_add_u32 {vu[3]}, {vu[2]}, 3, {vu[3]}")
    A(f"v_add_u32 {vu[3]}, {sRing[0]}, {vu[3]}")
    A(f"v_lshrrev_b32 {vu[1]}, 1, {vu[1]}")
    A(f"v_lshlrev_b32 {vu[1]}, 6, {vu[1]}")
    A(f"v_add_u32 {vTr[0]}, {vu[3]}, {vu[1]}")
    A(f"v_xor_b32 {vu[1]}, 64, {vu[1]}")
    A(f"v_add_u32 {vTr[1]}, {vu[3]}, {vu[1]}")
    A(f"v_bfe_u32 {vKc}, v0, 5, 1")
    A(f"v_lshlrev_b32 {vKc}, 4, {vKc}")
    A(f"v_lshlrev_b32 {vPc}, 4, {vu[0]}")
    A(f"v_lshl_add_u32 {vEc}, {vu[2]}, 1, {vPc}")
    A(f"s_lshr_b32 {sSt1}, {sNxt}, 16")
    A(f"s_and_b32 {sNxt}, {sNxt}, 0xffff")
    A(f"s_add_u32 {sT[0]}, {sPk[0]}, {sPk[1]}")
    A(f"s_add_u32 {sT[0]}, {sT[0]}, {sPk[2]}")
    A(f"s_lshr_b32 {sT[1]}, {sT[0]}, 16")
    A(f"s_and_b32 {sT[0]}, {sT[0]}, 0xffff")
    A(f"s_add_u32 {sEnd0}, {sNxt}, {sT[0]}")
    A(f"s_add_u32 {sRem}, {sT[0]}, {sT[1]}")
    A(f"s_cmp_eq_u32 {sNxt}, {sEnd0}")
    A(f"s_cselect_b32 {sNxt}, {sSt1}, {sNxt}")
    A("s_barrier")
    ts()
    A(f"s_cmp_eq_u32 {sRem}, 0")
    A("s_cbranch_scc1 K2_done")
    def rd_keys():
        A(f"s_lshl_b32 {sKo}, {sNxt}, 5")
        A(f"v_add_u32 {vKad}, {sKo}, {vKc}")
        A(f"ds_read_b128 {vK4}, {vKad} offset:{KEY}")
    def rd_pay():
        A(f"s_lshl_b32 {sPo}, {sNxt}, 7")
        A(f"v_add_u32 {vPad}, {sPo}, {vPc}")
        A(f"v_add_u32 {vEad}, {sPo}, {vEc}")
        A(f"ds_read_b64 {vSh[0:2]}, {vPad} offset:{PAY}")
        A(f"ds_read_b64 {vSh[2:4]}, {vPad} offset:{PAY+64}")
        A(f"ds_read_u16_d16_hi {vEa[0]}, {vEad} offset:{PAY+8}")
        A(f"ds_read_u16_d16_hi {vEa[1]}, {vEad} offset:{PAY+72}")
    def adv():
        A(f"s_add_u32 {sNxt}, {sNxt}, 1")
        A(f"s_cmp_eq_u32 {sNxt}, {sEnd0}")
        A(f"s_cselect_b32 {sNxt}, {sSt1}, {sNxt}")
    def addrs():
        for k in range(4):
            A(f"v_mad_u32_u16 {vAd[k]}, {vK4[k]}, {s512}, {vRow} op_sel:[1,0,0,0]")
    def dma():
        for k in range(4):
            A(f"s_mov_b32 m0, {sRing[k]}")
            A("s_nop 0")
            A(f"buffer_load_dwordx4 {vAd[k]}, {rX}, 0 offen lds")
    def coef():
        A(f"v_mfma_f32_4x4x4_16b_bf16 {vCf[0:4]}, {vCg}, {vSh[0:2]}, 0")
        A(f"v_mfma_f32_4x4x4_16b_bf16 {vCf[4:8]}, {vCg}, {vSh[2:4]}, 0")
        addrs()
        A("s_nop 0")
        A(f"v_pk_mul_f32 {vCf[0:2]}, {vCf[0:2]}, {vEa} op_sel_hi:[1,0]")
        A(f"v_pk_mul_f32 {vCf[2:4]}, {vCf[2:4]}, {vEa} op_sel_hi:[1,0]")
        A(f"v_pk_mul_f32 {vCf[4:6]}, {vCf[4:6]}, {vEa} op_sel:[0,1]")
        A(f"v_pk_mul_f32 {vCf[6:8]}, {vCf[6:8]}, {vEa} op_sel:[0,1]")
        for i in range(4): A(f"v_cvt_pk_bf16_f32 {vB[i]}, {vCf[2*i]}, {vCf[2*i+1]}")
    rd_keys()
    rd_pay()
    A("s_waitcnt lgkmcnt(4)")
    addrs()
    dma()
    adv()
    rd_keys()
    A("s_waitcnt lgkmcnt(0)")
    coef()
    A(f"s_mov_b32 {sPh}, 0")
    A("K2_phase:")
    for a in range(3):
        A(f"s_and_b32 {sCnt}, {sPk[a]}, 0xffff")
        A(f"s_cbranch_scc0 K2_seg{a}_end")
        A(f"K2_seg{a}:")
        A("s_waitcnt vmcnt(0)")
        for t in range(4):
            for h in range(2):
                A(f"ds_read_b64_tr_b16 {vX[4*t+2*h:4*t+2*h+2]}, {vTr[t>>1]} offset:{h*512 + (t&1)*32}")
        A(f"s_sub_u32 {sRem}, {sRem}, 1")
        A(f"s_cmp_eq_u32 {sRem}, 0")
        A("s_waitcnt lgkmcnt(0)")
        A(f"s_cbranch_scc1 K2_seg{a}_last")
        dma()
        rd_pay()
        adv()
        rd_keys()
        for t in range(4):
            A(f"v_mfma_f32_16x16x32_bf16 {vAcc[16*a+4*t:16*a+4*t+4]}, {vX[4*t:4*t+4]}, {vB}, {vAcc[16*a+4*t:16*a+4*t+4]}")
        A("s_waitcnt lgkmcnt(0)")
        coef()
        A(f"s_sub_u32 {sCnt}, {sCnt}, 1")
        A(f"s_cmp_lg_u32 {sCnt}, 0")
        A(f"s_cbranch_scc1 K2_seg{a}")
        A(f"K2_seg{a}_end:")
        A(f"s_lshr_b32 {sPk[a]}, {sPk[a]}, 16")
    A(f"s_add_u32 {sPh}, {sPh}, 1")
    A(f"s_cmp_lt_u32 {sPh}, 2")
    A("s_cbranch_scc1 K2_phase")
    A("s_branch K2_done")
    for a in range(3):
        A(f"K2_seg{a}_last:")
        for t in range(4):
            A(f"v_mfma_f32_16x16x32_bf16 {vAcc[16*a+4*t:16*a+4*t+4]}, {vX[4*t:4*t+4]}, {vB}, {vAcc[16*a+4*t:16*a+4*t+4]}")
        if a < 2: A("s_branch K2_done")
    A("K2_done:")
    ts()
    A(f"s_cmp_lg_u32 {sSlow}, 0")
    A("s_cbranch_scc1 K2_nextround")
    A("K2_epi:")
    A(f"s_cmp_ge_u32 {sWave}, 14")
    A("s_cbranch_scc1 K2_fin")
    V.reset(mV)
    vu = V.alloc(2, 2); vW = V.alloc(32, 2); vWf = V.alloc(16, 2); vA = V.alloc(8, 2); vo = V.alloc(2, 2)
    A(f"v_lshlrev_b32 {vu[0]}, 4, {vLane}")
    for i in range(4):
        A(f"ds_read_b128 {vWf[4*i:4*i+4]}, {vu[0]} offset:{WRF + 1024*i}")
    for i in range(8):
        A(f"ds_read_b128 {vW[4*i:4*i+4]}, {vu[0]} offset:{WOP + 1024*i}")
    A(f"v_lshlrev_b32 {vu[1]}, 3, {vLane}")
    A(f"s_mul_i32 {sT[0]}, {sWave}, 3")
    A(f"s_add_u32 {sT[0]}, {sT[0]}, {sN0}")
    A("s_waitcnt lgkmcnt(0)")
    for a in range(3):
        A(f"s_cmp_ge_u32 {sT[0]}, {sN1}")
        A("s_cbranch_scc1 K2_fin")
        acc = vAcc[16*a:16*a+16]
        for i in range(8):
            A(f"v_pk_mul_f32 {acc[2*i:2*i+2]}, {acc[2*i:2*i+2]}, {vWf[2*i:2*i+2]}")
        for i in range(8):
            A(f"v_cvt_pk_bf16_f32 {vA[i]}, {acc[2*i]}, {acc[2*i+1]}")
        A(f"s_lshl_b32 {sT[1]}, {sT[0]}, 9")
        A(f"s_add_u32 {sT[0]}, {sT[0]}, 1")
        for tau in range(4):
            A(f"v_mfma_f32_16x16x32_bf16 {acc[4*tau:4*tau+4]}, {vA[0:4]}, {vW[4*tau:4*tau+4]}, 0")
        for tau in range(4):
            A(f"v_mfma_f32_16x16x32_bf16 {acc[4*tau:4*tau+4]}, {vA[4:8]}, {vW[16+4*tau:20+4*tau]}, {acc[4*tau:4*tau+4]}")
        A("s_nop 4")
        for tau in range(4):
            A(f"v_pk_add_f32 {acc[4*tau:4*tau+2]}, {acc[4*tau:4*tau+2]}, {acc[4*tau+2:4*tau+4]}")
            A(f"v_add_f32 {acc[4*tau]}, {acc[4*tau]}, {acc[4*tau+1]}")
        A(f"v_cvt_pk_bf16_f32 {vo[0]}, {acc[0]}, {acc[4]}")
        A(f"v_cvt_pk_bf16_f32 {vo[1]}, {acc[8]}, {acc[12]}")
        A(f"buffer_store_dwordx2 {vo}, {vu[1]}, {rO}, {sT[1]} offen")
    A("K2_fin:")
    if o.get('ts'):
        ts()
        A("s_waitcnt vmcnt(0)")
        ts()
        ts.flush(vu[0], sWave, rW)
    A("K2_end:")
    A("s_endpgm")
    A("K2_toslow:")
    A.c("some run is long or the bin is too full: redo in rounds of (64 runs x 32 records)")
    A("s_waitcnt vmcnt(0) lgkmcnt(0)")
    for r in range(4):
        A(f"v_lshrrev_b32 {vt[1]}, 16, {vE[r]}")
        A(f"v_and_b32 {vt[2]}, 0xffff, {vE[r]}")
        A(f"v_sub_u32 {vt[1]}, {vt[1]}, {vt[2]}")
        if r == 0: A(f"v_mov_b32 {vt[0]}, {vt[1]}")
        else: A(f"v_max_u32 {vt[0]}, {vt[0]}, {vt[1]}")
    A(f"v_mov_b32 {vt[1]}, 0")
    A(f"ds_max_u32 {vt[1]}, {vt[0]} offset:{MISC+4}")
    A("s_waitcnt lgkmcnt(0)")
    A("s_barrier")
    A(f"ds_read_b32 {vt[0]}, {vt[1]} offset:{MISC+4}")
    A("s_waitcnt lgkmcnt(0)")
    A(f"v_readfirstlane_b32 {sMaxN}, {vt[0]}")
    A(f"s_mov_b32 {sSlow}, 1")
    A("s_barrier")
    A("s_branch K2_round")
    A("K2_nextround:")
    A(f"s_add_u32 {sBase}, {sBase}, 32")
    A(f"s_cmp_lt_u32 {sBase}, {sMaxN}")
    A("s_cbranch_scc1 K2_again")
    A(f"s_mov_b32 {sBase}, 0")
    A(f"s_add_u32 {sR}, {sR}, 1")
    A(f"s_cmp_ge_u32 {sR}, 4")
    A("s_cbranch_scc1 K2_epi")
    A("K2_again:")
    A("s_waitcnt vmcnt(0) lgkmcnt(0)")
    A("s_barrier")
    A("s_branch K2_round")
    return A.text() + kd(name, V.hi, S.hi), LDS

HEAD = open("gather_scatter__tensor_product_equiv_mace__graph.s.ref").read().split("; Override launch")[0]

def build(o):
    k1, l1 = gen_k1(o); k2, l2 = gen_k2(o)
    t = HEAD
    t += f"; @launch kernel=part_kernel grid=(256,1,1) block=(640,1,1) lds={l1}\n"
    t += f"; @launch kernel=gather_scatter__tensor_product_equiv_mace__graph_kernel grid=(256,1,1) block=(1024,1,1) lds={l2}\n"
    t += '.amdgcn_target "amdgcn-amd-amdhsa--gfx950"\n.text\n' + k1 + k2
    return t

if __name__ == "__main__":
    o = dict(pf=0.6)
    for a in sys.argv[2:]:
        k, v = a.split("=")
        try: v = eval(v)
        except Exception: pass
        o[k] = v
    open(sys.argv[1], "w").write(build(o))
```

```python
import sys
from asmlib import *

N = 10000; E = 640000; CH = 2500
REG = 53248
TAB = 256 * REG
WSB = TAB + 256 * 1024
MAGIC = 429497
TSB = 0x1000000

class Stamps:
    def __init__(self, A, S, on, which, n=9):
        self.A = A; self.on = on; self.k = 0; self.which = which; self.n = n
        if on: self.r = S.alloc(2 * n, 2)
    def __call__(self):
        if self.on:
            self.A(f"s_memrealtime {self.r[2*self.k:2*self.k+2]}")
            self.k += 1
    def init(self, ws):
        self.ws = ws
        if self.on:
            for i in range(2, 2 * self.n, 2): self.A(f"s_mov_b32 {self.r[i]}, 0")
    def flush(self, vt, swave, d):
        if not self.on: return
        A = self.A
        A("s_waitcnt lgkmcnt(0)")
        srd(A, d, self.ws, 0x10000000)
        A("s_mov_b64 exec, 1")
        A(f"s_lshl_b32 s3, s2, 4")
        A(f"s_add_u32 s3, s3, {swave}")
        A(f"s_lshl_b32 s3, s3, 6")
        A(f"s_add_u32 s3, s3, {TSB + self.which * 0x100000}")
        for i in range(12):
            A(f"v_mov_b32 {vt}, {self.r[2*i] if i < self.n else 0}")
            A(f"buffer_store_dword {vt}, off, {d}, s3 offset:{4*i}")
            A("s_nop 1")

def gen_k1(o):
    name = "part_kernel"
    A = Asm(); V = Regs("v", 1, 128); S = Regs("s", 4, 100)
    STAGE = 0; CNT = REG; ENT = CNT + 1024; UW = ENT + 1024; LDS = UW + 16
    ldp = o.get('k1_ld', 'nt'); stp = o.get('k1_st', '')
    A(f".globl {name}\n.p2align 8\n.type {name},@function\n{name}:")
    sP = S.alloc(16, 4); sWS = S.alloc(2, 2)
    sX, sSrc, sDst, sSh, sEa = sP[0:2], sP[2:4], sP[4:6], sP[6:8], sP[8:10]
    rOut = S.alloc(4, 4); rTab = S.alloc(4, 4); rX = S.alloc(4, 4)
    sAct = S.alloc(2, 2); sM = S.alloc(); s625 = S.alloc(); sT = S.alloc(); sWave = S.alloc(); s16 = S.alloc()
    ts = Stamps(A, S, o.get('ts'), 0)
    A("s_cmp_ge_u32 s2, 256")
    A("s_cbranch_scc1 K1_end")
    ts()
    A(f"s_load_dwordx16 {sP}, s[0:1], 0")
    A(f"s_load_dwordx2 {sWS}, s[0:1], 80")
    vo4 = V.alloc(2); vo8 = V.alloc(2); vt = V.alloc(4, 2); vOne = V.alloc()
    vD = V.alloc(4, 2); vS = V.alloc(4, 2); vSh = V.alloc(8, 2); vEa = V.alloc(8, 2)
    vC = V.alloc(4); vRk = V.alloc(4); vKey = V.alloc(4); vEnt = V.alloc(4); vPf = V.alloc(2)
    A.c("zero the bin counters")
    A(f"v_lshlrev_b32 {vt[0]}, 2, v0")
    A(f"v_mov_b32 {vt[1]}, 0")
    A(f"v_cmp_gt_u32 vcc, 256, v0")
    A(f"s_and_saveexec_b64 {sAct}, vcc")
    A(f"ds_write_b32 {vt[0]}, {vt[1]} offset:{CNT}")
    A(f"s_mov_b64 exec, {sAct}")
    A(f"v_lshrrev_b32 {vt[2]}, 6, v0")
    A(f"s_mul_i32 {sT}, s2, {CH*4}")
    A(f"v_readfirstlane_b32 {sWave}, {vt[2]}")
    A(f"v_lshl_add_u32 {vo4[0]}, v0, 3, {sT}")
    A(f"v_add_u32 {vo4[1]}, {CH*2}, {vo4[0]}")
    A(f"v_lshlrev_b32 {vo8[0]}, 1, {vo4[0]}")
    A(f"v_lshlrev_b32 {vo8[1]}, 1, {vo4[1]}")
    A(f"v_mov_b32 {vOne}, 4")
    A(f"s_mov_b32 {sM}, {MAGIC}")
    A(f"s_movk_i32 {s625}, 625")
    A(f"s_movk_i32 {s16}, 16")
    A(f"v_cmp_gt_u32 vcc, {CH//4}, v0")
    A(f"s_waitcnt lgkmcnt(0)")
    A(f"s_mov_b64 {sAct}, vcc")
    A(f"s_mov_b64 exec, vcc")
    A(f"global_load_dwordx2 {vD[0:2]}, {vo4[0]}, {sDst} {ldp}")
    A(f"global_load_dwordx2 {vD[2:4]}, {vo4[1]}, {sDst} {ldp}")
    A(f"global_load_dwordx2 {vS[0:2]}, {vo4[0]}, {sSrc} {ldp}")
    A(f"global_load_dwordx2 {vS[2:4]}, {vo4[1]}, {sSrc} {ldp}")
    A(f"global_load_dwordx4 {vSh[0:4]}, {vo8[0]}, {sSh} {ldp}")
    A(f"global_load_dwordx4 {vEa[0:4]}, {vo8[0]}, {sEa} {ldp}")
    A(f"global_load_dwordx4 {vSh[4:8]}, {vo8[1]}, {sSh} {ldp}")
    A(f"global_load_dwordx4 {vEa[4:8]}, {vo8[1]}, {sEa} {ldp}")
    A("s_mov_b64 exec, -1")
    ts.init(sWS)
    A(f"s_mul_i32 {sT}, s2, {REG}")
    A(f"s_add_u32 {rOut[0]}, {sWS[0]}, {sT}")
    A(f"s_addc_u32 {rOut[1]}, {sWS[1]}, 0")
    A(f"s_and_b32 {rOut[1]}, {rOut[1]}, 0xffff")
    A(f"s_mov_b32 {rOut[2]}, 0")
    A(f"s_mov_b32 {rOut[3]}, 0x20000")
    srd(A, rTab, sWS, WSB)
    npf = 0
    pf = o.get('pf', 0.0)
    if pf > 0:
        A.c("touch the leading part of x so that it is in this die's L2 when the gather starts (speed only)")
        lines = int(pf * 40000) // 32
        srd(A, rX, sX, N * 512)
        A(f"s_lshr_b32 {sT}, s2, 3")
        A(f"s_mul_i32 {sT}, {sT}, {lines*128}")
        A(f"v_lshlrev_b32 {vt[0]}, 7, v0")
        for k in range((lines + 639) // 640):
            rem = lines - 640 * k
            if rem < 640:
                A(f"v_cmp_gt_u32 vcc, {rem}, v0")
                A(f"s_or_b64 exec, vcc, 1")
            A(f"buffer_load_dword {vPf[0]}, {vt[0]}, {rX}, {sT} offen")
            A(f"s_add_u32 {sT}, {sT}, {640*128}")
            npf += 1
        A("s_mov_b64 exec, -1")
        rest = 40000 - lines * 32
        if rest > 0 and o.get('pfrest', 1):
            per = (rest + 255) // 256
            A(f"s_mul_i32 {sT}, s2, {per*128}")
            A(f"s_add_u32 {sT}, {sT}, {lines*32*128}")
            A(f"v_cmp_gt_u32 vcc, {per}, v0")
            A(f"s_or_b64 exec, vcc, 1")
            A(f"buffer_load_dword {vPf[1]}, {vt[0]}, {rX}, {sT} offen nt")
            A("s_mov_b64 exec, -1")
            npf += 1
    A("s_barrier")
    A(f"s_mov_b64 exec, {sAct}")
    A(f"s_waitcnt vmcnt({0 if o.get('k1safe') else 6 + npf})")
    ts()
    for e in range(4):
        A(f"v_mul_u32_u24 {vt[0]}, {sM}, {vD[e]}")
        A(f"v_lshlrev_b32_sdwa {vC[e]}, 2, {vt[0]} dst_sel:DWORD dst_unused:UNUSED_PAD src0_sel:DWORD src1_sel:BYTE_3")
        A(f"ds_add_rtn_u32 {vRk[e]}, {vC[e]}, {vOne} offset:{CNT}")
    for e in range(4):
        A(f"v_mad_u32_u24 {vt[0]}, {vC[e]}, {s625}, 60")
        A(f"v_lshrrev_b32 {vt[0]}, 6, {vt[0]}")
        A(f"v_sub_u32 {vD[e]}, {vD[e]}, {vt[0]}")
    A(f"s_waitcnt lgkmcnt(0)")
    A("s_barrier")
    ts()
    A("s_mov_b64 exec, -1")
    A(f"s_cmp_lg_u32 {sWave}, 9")
    A("s_cbranch_scc1 K1_noscan")
    A.c("wave 9: run sizes (payload units + key units), exclusive scan, entries {first unit, first key unit}")
    m = V.mark()
    vc = V.alloc(4, 2); vz = V.alloc(4); vi = V.alloc(); vl = V.alloc(); ve = V.alloc(4, 2); vg = V.alloc(4, 2)
    A(f"v_and_b32 {vl}, 63, v0")
    A(f"v_lshlrev_b32 {vl}, 4, {vl}")
    A(f"ds_read_b128 {vc}, {vl} offset:{CNT}")
    A(f"s_lshl_b32 {sT}, s2, 10")
    A(f"s_add_u32 {sT}, {sT}, {TAB}")
    A("s_waitcnt lgkmcnt(0)")
    for i in range(4):
        A(f"v_add_u32 {vz[i]}, 12, {vc[i]}")
        A(f"v_lshrrev_b32 {vc[i]}, 2, {vc[i]}")
        A(f"v_lshrrev_b32 {vz[i]}, 4, {vz[i]}")
    A(f"v_add_u32 {vz[0]}, {vz[0]}, {vc[0]}")
    for i in range(1, 4):
        A(f"v_add3_u32 {vz[i]}, {vz[i]}, {vc[i]}, {vz[i-1]}")
    A(f"v_mov_b32 {vi}, {vz[3]}")
    scan64(A, vi)
    A(f"v_sub_u32 {ve[0]}, {vi}, {vz[3]}")
    for i in range(1, 4):
        A(f"v_add_u32 {ve[i]}, {ve[0]}, {vz[i-1]}")
    for i in range(4):
        A(f"v_add_u32 {vc[i]}, {vc[i]}, {ve[i]}")
        A(f"v_lshl_or_b32 {vg[i]}, {vc[i]}, 16, {ve[i]}")
    A(f"ds_write_b128 {vl}, {vg} offset:{ENT}")
    A(f"buffer_store_dwordx4 {vg}, {vl}, {rTab}, {sT} offen {stp}")
    A(f"s_mov_b64 exec, 0x8000000000000000" if False else f"s_mov_b32 exec_lo, 0\ns_mov_b32 exec_hi, 0x80000000")
    A(f"v_mov_b32 {vl}, 0")
    A(f"ds_write_b32 {vl}, {vi} offset:{UW}")
    A("s_mov_b64 exec, -1")
    A("s_waitcnt lgkmcnt(0)")
    V.reset(m)
    A("K1_noscan:")
    A(f"s_mov_b64 exec, {sAct}")
    A(f"s_waitcnt vmcnt({4 + npf})")
    for e in range(4):
        A(f"v_mul_u32_u24 {vt[0]}, {sM}, {vS[e]}")
        A(f"v_alignbit_b32 {vt[0]}, {vD[e]}, {vt[0]}, 30")
        A(f"v_lshl_or_b32 {vKey[e]}, {vS[e]}, 16, {vt[0]}")
    A("s_barrier")
    ts()
    for e in range(4):
        A(f"ds_read_b32 {vEnt[e]}, {vC[e]} offset:{ENT}")
    A(f"v_mov_b32 {vt[3]}, 0")
    A(f"ds_read_b32 {vt[3]}, {vt[3]} offset:{UW}")
    for e in range(4):
        A(f"s_waitcnt lgkmcnt({0 if o.get('k1safe') else 4})")
        A(f"v_mad_u32_u16 {vt[0]}, {vEnt[e]}, {s16}, {vRk[e]} op_sel:[1,0,0,0]")
        A(f"ds_write_b32 {vt[0]}, {vKey[e]} offset:{STAGE}")
        A(f"v_lshlrev_b32 {vRk[e]}, 2, {vRk[e]}")
        A(f"v_mad_u32_u16 {vC[e]}, {vEnt[e]}, {s16}, {vRk[e]}")
    A(f"s_waitcnt vmcnt({2 + npf})")
    for e in range(2):
        A(f"ds_write2_b64 {vC[e]}, {vSh[2*e:2*e+2]}, {vEa[2*e:2*e+2]} offset0:0 offset1:1")
    A(f"s_waitcnt vmcnt({npf})")
    ts()
    for e in range(2, 4):
        A(f"ds_write2_b64 {vC[e]}, {vSh[2*e:2*e+2]}, {vEa[2*e:2*e+2]} offset0:0 offset1:1")
    A("s_waitcnt lgkmcnt(0)")
    A(f"v_readfirstlane_b32 {sT}, {vt[3]}")
    A("s_mov_b64 exec, -1")
    A(f"v_lshlrev_b32 {vt[0]}, 4, v0")
    A(f"s_lshl_b32 {rOut[2]}, {sT}, 4")
    A("s_barrier")
    ts()
    vO = V.alloc(24, 2)
    for k in range(5):
        A(f"ds_read_b128 {vO[4*k:4*k+4]}, {vt[0]} offset:{STAGE + k*10240}")
    A(f"s_cmp_gt_u32 {sWave}, 1")
    A("s_cbranch_scc1 K1_no6")
    A(f"ds_read_b128 {vO[20:24]}, {vt[0]} offset:{STAGE + 5*10240}")
    A(f"s_mov_b32 {sT}, {5*10240}")
    A("s_waitcnt lgkmcnt(0)")
    A(f"buffer_store_dwordx4 {vO[20:24]}, {vt[0]}, {rOut}, {sT} offen {stp}")
    A("K1_no6:")
    for k in range(5):
        A(f"s_mov_b32 {sT}, {k*10240}")
        A(f"s_waitcnt lgkmcnt({0 if o.get('k1safe') else 4-k})")
        A(f"buffer_store_dwordx4 {vO[4*k:4*k+4]}, {vt[0]}, {rOut}, {sT} offen {stp}")
    if o.get('ts'):
        ts()
        A("s_waitcnt vmcnt(0)")
        ts()
        ts.flush(vt[1], sWave, rTab)
    A("K1_end:")
    A("s_endpgm")
    return A.text() + kd(name, V.hi, S.hi), LDS

def gen_k2(o):
    name = "gather_scatter__tensor_product_equiv_mace__graph_kernel"
    A = Asm(); V = Regs("v", 1, 128); S = Regs("s", 4, 102)
    CAP = 3072
    CNT = 0; TBL = 1024; SEG = 3072; MISC = 3584; WOP = 4096; WRF = WOP + 8192; KEY = WRF + 4096
    PAY = KEY + CAP * 4 + 128; RING = PAY + CAP * 16 + 128; LDS = RING + 14 * 4224
    assert RING % 64 == 0 and PAY < 65536 - 256 and LDS <= 163840
    ldp = o.get('k2_ld', 'nt')
    A(f".globl {name}\n.p2align 8\n.type {name},@function\n{name}:")
    sXp = S.alloc(2, 2); sQ = S.alloc(8, 4); sWS = S.alloc(2, 2)
    sCg, sWr, sWo, sOut = sQ[0:2], sQ[2:4], sQ[4:6], sQ[6:8]
    rX = S.alloc(4, 4); rW = S.alloc(4, 4); rO = S.alloc(4, 4)
    sWave = S.alloc(); sBin = S.alloc(); sN0 = S.alloc(); sN1 = S.alloc(); sT = S.alloc(2, 2)
    sSlow = S.alloc(); sR = S.alloc(); sBase = S.alloc(); sMaxN = S.alloc()
    sCo = S.alloc(4); s16 = S.alloc(); s512 = S.alloc()
    sM0 = S.alloc(8, 2); sM1 = S.alloc(8, 2); sEn = S.alloc(2, 2); sAny1 = S.alloc(2, 2)
    sPk = S.alloc(3); sNxt = S.alloc(); sEnd0 = S.alloc(); sSt1 = S.alloc(); sRem = S.alloc(); sCnt = S.alloc(); sPh = S.alloc()
    sRing = S.alloc(4); sKo = S.alloc(); sPo = S.alloc()
    ts = Stamps(A, S, o.get('ts'), 1)
    A("s_cmp_ge_u32 s2, 256")
    A("s_cbranch_scc1 K2_end")
    ts()
    A(f"s_load_dwordx2 {sWS}, s[0:1], 80")
    A(f"s_load_dwordx2 {sXp}, s[0:1], 0")
    A(f"s_load_dwordx8 {sQ}, s[0:1], 40")
    vLane = V.alloc(); vCg = V.alloc(2, 2); vAcc = V.alloc(48, 4)
    mV = V.mark()
    vt = V.alloc(4, 2); vI = V.alloc(); vChunk = V.alloc(); vK0 = V.alloc(); vOne = V.alloc()
    vE = V.alloc(4); vKa = V.alloc(4, 2); vRk = V.alloc(8); vPa = vRk[0:4]
    vKey = V.alloc(8); vP = V.alloc(32, 2)
    A(f"v_lshrrev_b32 {vt[0]}, 6, v0")
    A(f"v_and_b32 {vLane}, 63, v0")
    A(f"v_readfirstlane_b32 {sWave}, {vt[0]}")
    A(f"s_and_b32 {sBin}, s2, 7")
    A(f"s_lshl_b32 {sBin}, {sBin}, 5")
    A(f"s_lshr_b32 {sT[0]}, s2, 3")
    A(f"s_add_u32 {sBin}, {sBin}, {sT[0]}")
    A(f"s_mul_i32 {sN0}, {sBin}, 625")
    A(f"s_add_u32 {sN1}, {sN0}, {625+15}")
    A(f"s_add_u32 {sN0}, {sN0}, 15")
    A(f"s_lshr_b32 {sN0}, {sN0}, 4")
    A(f"s_lshr_b32 {sN1}, {sN1}, 4")
    A(f"s_mov_b32 {sSlow}, 0")
    A(f"s_mov_b32 {sR}, 0")
    A(f"s_mov_b32 {sBase}, 0")
    A(f"s_mov_b32 {sMaxN}, 0")
    A(f"s_movk_i32 {s16}, 16")
    A(f"s_movk_i32 {s512}, 512")
    for r in range(4): A(f"s_mov_b32 {sCo[r]}, {r*64*REG}")
    A(f"s_mul_i32 {sRing[0]}, {sWave}, 4224")
    A(f"s_add_u32 {sRing[0]}, {sRing[0]}, {RING}")
    for k in range(1, 4): A(f"s_add_u32 {sRing[k]}, {sRing[0]}, {1056*k}")
    for i in range(0, 48, 2): A(f"v_mov_b64 {vAcc[i:i+2]}, 0")
    A("s_waitcnt lgkmcnt(0)")
    srd(A, rW, sWS, WSB); srd(A, rX, sXp, N * 512); srd(A, rO, sOut, N * 512)
    ts.init(sWS)
    A("K2_round:")
    A.c("run table entries of this bin: lane group q = tid>>4 reads chunks q+64r")
    A(f"v_lshrrev_b32 {vChunk}, 4, v0")
    A(f"s_lshl_b32 {sT[0]}, {sBin}, 2")
    A(f"s_add_u32 {sT[0]}, {sT[0]}, {TAB}")
    A(f"v_lshl_add_u32 {vt[0]}, {vChunk}, 10, {sT[0]}")
    for r in range(4):
        A(f"s_mov_b32 {sT[1]}, {r*65536}")
        A(f"buffer_load_dword {vE[r]}, {vt[0]}, {rW}, {sT[1]} offen")
    A.c("constants (first round only)")
    A(f"s_cmp_lg_u32 {sSlow}, 0")
    A("s_cbranch_scc1 K2_noconst")
    A(f"v_and_b32 {vt[0]}, 3, v0")
    A(f"v_bfe_u32 {vt[1]}, v0, 2, 2")
    A(f"v_lshlrev_b32 {vt[2]}, 5, {vt[0]}")
    A(f"v_lshl_add_u32 {vt[2]}, {vt[1]}, 1, {vt[2]}")
    A(f"global_load_ushort {vCg[0]}, {vt[2]}, {sCg}")
    A(f"global_load_ushort {vKey[0]}, {vt[2]}, {sCg} offset:8")
    A(f"global_load_ushort {vCg[1]}, {vt[2]}, {sCg} offset:16")
    A(f"global_load_ushort {vKey[1]}, {vt[2]}, {sCg} offset:24")
    A(f"v_bfe_u32 {vt[1]}, v0, 4, 2")
    A(f"s_cmp_lt_u32 {sWave}, 13")
    A("s_cbranch_scc1 K2_now")
    A(f"s_cmp_gt_u32 {sWave}, 13")
    A("s_cbranch_scc1 K2_wout")
    A.c("wave 13: w_r as f32 in LDS, lane (g,w,k): wr[k][16t+4g+r]")
    A(f"v_lshlrev_b32 {vt[2]}, 7, {vt[0]}")
    A(f"v_lshl_add_u32 {vt[2]}, {vt[1]}, 3, {vt[2]}")
    for t in range(4):
        A(f"global_load_dwordx2 {vP[2*t:2*t+2]}, {vt[2]}, {sWr} offset:{32*t}")
    A(f"v_lshlrev_b32 {vt[0]}, 4, {vLane}")
    A("s_waitcnt vmcnt(0)")
    for t in range(4):
        for i in range(2):
            A(f"v_lshlrev_b32 {vP[16+4*t+2*i]}, 16, {vP[2*t+i]}")
            A(f"v_and_b32 {vP[16+4*t+2*i+1]}, 0xffff0000, {vP[2*t+i]}")
        A(f"ds_write_b128 {vt[0]}, {vP[16+4*t:20+4*t]} offset:{WRF + 1024*t}")
    A("s_branch K2_now")
    A("K2_wout:")
    A.c("waves 14,15: w_out as MFMA B operands in LDS. K-step s = wave-14; lane (g,n): W[32s+16(j>>2)+4g+(j&3)][4n+tau]")
    A(f"s_sub_u32 {sT[0]}, {sWave}, 14")
    A(f"s_lshl_b32 {sT[1]}, {sT[0]}, 12")
    A(f"v_and_b32 {vt[0]}, 15, v0")
    A(f"v_lshlrev_b32 {vt[0]}, 3, {vt[0]}")
    A(f"v_lshl_add_u32 {vt[0]}, {vt[1]}, 9, {vt[0]}")
    A(f"v_add_u32 {vt[0]}, {sT[1]}, {vt[0]}")
    for j in range(8):
        A(f"global_load_dwordx2 {vP[2*j:2*j+2]}, {vt[0]}, {sWo} offset:{2048*(j>>2) + 128*(j&3)}")
    A(f"v_lshl_add_u32 {vt[0]}, {vLane}, 4, {sT[1]}")
    A(f"s_mov_b32 {sT[0]}, 0x05040100")
    A(f"s_mov_b32 {sT[1]}, 0x07060302")
    A("s_waitcnt vmcnt(0)")
    for tau in range(4):
        for jj in range(4):
            A(f"v_perm_b32 {vP[16+4*tau+jj]}, {vP[2*(2*jj+1) + (tau>>1)]}, {vP[2*(2*jj) + (tau>>1)]}, {sT[tau&1]}")
        A(f"ds_write_b128 {vt[0]}, {vP[16+4*tau:20+4*tau]} offset:{WOP + 1024*tau}")
    A("K2_now:")
    A("K2_noconst:")
    A.c("LDS init: counters/flags 0, keys = out-of-range marker, payload 0")
    A(f"v_mov_b64 {vP[0:2]}, 0")
    A(f"v_mov_b64 {vP[2:4]}, 0")
    A(f"v_mov_b64 {vP[4:6]}, -1")
    A(f"v_mov_b64 {vP[6:8]}, -1")
    A(f"v_lshlrev_b32 {vt[0]}, 4, v0")
    for k in range(3):
        A(f"ds_write_b128 {vt[0]}, {vP[0:4]} offset:{PAY + 16384*k}")
    A(f"v_lshlrev_b32 {vt[1]}, 2, v0")
    A(f"ds_write_b32 {vt[1]}, {vP[0]} offset:{CNT}")
    A(f"v_cmp_gt_u32 vcc, {(CAP*4+128)//16}, v0")
    A(f"s_and_saveexec_b64 {sEn}, vcc")
    A(f"ds_write_b128 {vt[0]}, {vP[4:8]} offset:{KEY}")
    A(f"s_mov_b64 exec, {sEn}")
    A(f"v_and_b32 {vI}, 15, v0")
    A(f"v_add_u32 {vI}, {sBase}, {vI}")
    A(f"s_mov_b32 {sT[0]}, {REG}")
    A(f"v_mul_u32_u24 {vChunk}, {sT[0]}, {vChunk}")
    A(f"v_lshl_add_u32 {vK0}, {vI}, 2, {vChunk}")
    A(f"v_mov_b32 {vOne}, 1")
    A("s_waitcnt lgkmcnt(0)")
    A("s_barrier")
    A("s_waitcnt vmcnt(0)")
    ts()
    A(f"s_cmp_lg_u32 {sSlow}, 0")
    A("s_cbranch_scc1 K2_nocg")
    A(f"v_lshl_or_b32 {vCg[0]}, {vKey[0]}, 16, {vCg[0]}")
    A(f"v_lshl_or_b32 {vCg[1]}, {vKey[1]}, 16, {vCg[1]}")
    A("K2_nocg:")
    A(f"s_mov_b64 {sAny1}, 0")
    for r in range(4):
        A(f"s_cmp_eq_u32 {sR}, {r}")
        A(f"s_cselect_b64 {sEn}, -1, 0")
        A(f"s_cmp_eq_u32 {sSlow}, 0")
        A(f"s_cselect_b64 {sEn}, -1, {sEn}")
        A(f"v_add_u32_sdwa {vt[0]}, {vI}, {vE[r]} dst_sel:DWORD dst_unused:UNUSED_PAD src0_sel:DWORD src1_sel:WORD_0")
        A(f"v_mad_u32_u16 {vKa[r]}, {vE[r]}, {s16}, {vK0} op_sel:[1,0,0,0]")
        A(f"v_cmp_lt_u32_sdwa vcc, {vt[0]}, {vE[r]} src0_sel:DWORD src1_sel:WORD_1")
        A(f"v_lshl_add_u32 {vPa[r]}, {vt[0]}, 4, {vChunk}")
        A(f"s_and_b64 {sM0[2*r:2*r+2]}, vcc, {sEn}")
        A(f"v_add_u32 {vt[0]}, 16, {vt[0]}")
        A(f"v_cmp_lt_u32_sdwa vcc, {vt[0]}, {vE[r]} src0_sel:DWORD src1_sel:WORD_1")
        A(f"s_or_b64 exec, {sM0[2*r:2*r+2]}, 1")
        A(f"buffer_load_dword {vKey[r]}, {vKa[r]}, {rW}, {sCo[r]} offen {ldp}")
        A(f"s_and_b64 {sM1[2*r:2*r+2]}, vcc, {sEn}")
        A(f"s_or_b64 {sAny1}, {sAny1}, {sM1[2*r:2*r+2]}")
        A("s_mov_b64 exec, -1")
    A(f"s_cmp_eq_u64 {sAny1}, 0")
    A("s_cbranch_scc1 K2_noh1")
    for r in range(4):
        A(f"s_mov_b64 exec, {sM1[2*r:2*r+2]}")
        A(f"s_cbranch_execz K2_noh1_{r}")
        A(f"buffer_load_dword {vKey[4+r]}, {vKa[r]}, {rW}, {sCo[r]} offen offset:64 {ldp}")
        A(f"buffer_load_dwordx4 {vP[16+4*r:20+4*r]}, {vPa[r]}, {rW}, {sCo[r]} offen offset:256 {ldp}")
        A(f"K2_noh1_{r}:")
    A("K2_noh1:")
    for r in range(4):
        A(f"s_or_b64 exec, {sM0[2*r:2*r+2]}, 1")
        A(f"buffer_load_dwordx4 {vP[4*r:4*r+4]}, {vPa[r]}, {rW}, {sCo[r]} offen {ldp}")
    A(f"s_waitcnt vmcnt({0 if o.get('k2safe') else 4})")
    ts()
    def byte0(dst, sh, src):
        A(f"v_lshlrev_b32_sdwa {dst}, {sh}, {src} dst_sel:DWORD dst_unused:UNUSED_PAD src0_sel:DWORD src1_sel:BYTE_0")
    for r in range(4):
        A(f"s_mov_b64 exec, {sM0[2*r:2*r+2]}")
        byte0(vt[r], 2, vKey[r])
        A(f"ds_add_rtn_u32 {vRk[r]}, {vt[r]}, {vOne} offset:{CNT}")
    A(f"s_cmp_eq_u64 {sAny1}, 0")
    A("s_cbranch_scc1 K2_noh1b")
    for r in range(4):
        A(f"s_mov_b64 exec, {sM1[2*r:2*r+2]}")
        byte0(vt[r], 2, vKey[4+r])
        A(f"ds_add_rtn_u32 {vRk[4+r]}, {vt[r]}, {vOne} offset:{CNT}")
    A.c("a run with 32 or more records: leave the one-round path")
    A(f"s_and_b32 {sT[0]}, {sAny1[0]}, 0x80008000")
    A(f"s_and_b32 {sT[1]}, {sAny1[1]}, 0x80008000")
    A(f"s_mov_b64 exec, {sT}")
    A(f"v_mov_b32 {vt[0]}, 0")
    A(f"ds_write_b32 {vt[0]}, {vOne} offset:{MISC}")
    A("K2_noh1b:")
    A("s_mov_b64 exec, -1")
    A("s_waitcnt lgkmcnt(0)")
    A("s_barrier")
    ts()
    A(f"s_cmp_lg_u32 {sWave}, 15")
    A("s_cbranch_scc1 K2_noscan")
    A.c("wave 15: lane = node. counts -> 8-edge steps per phase -> positions")
    vc = vKa; vw = V.alloc(8, 2)
    assert vc.i % 2 == 0
    A(f"v_lshlrev_b32 {vt[0]}, 4, {vLane}")
    A(f"ds_read_b128 {vc}, {vt[0]} offset:{CNT}")
    A("s_waitcnt lgkmcnt(0)")
    A(f"v_add_u32 {vc[1]}, {vc[0]}, {vc[1]}")
    A(f"v_add_u32 {vc[2]}, {vc[1]}, {vc[2]}")
    A(f"v_add3_u32 {vc[3]}, {vc[2]}, {vc[3]}, 7")
    A(f"v_lshrrev_b32 {vc[3]}, 3, {vc[3]}")
    A(f"v_add_u32 {vt[1]}, 4, {vc[1]}")
    A(f"v_lshrrev_b32 {vt[1]}, 3, {vt[1]}")
    A(f"v_sub_u32 {vc[3]}, {vc[3]}, {vt[1]}")
    A(f"v_lshl_or_b32 {vt[3]}, {vc[3]}, 16, {vt[1]}")
    A(f"v_mov_b32 {vt[2]}, {vt[3]}")
    scan64(A, vt[2])
    A("s_nop 0")
    A(f"v_readlane_b32 {sT[0]}, {vt[2]}, 63")
    A(f"v_sub_u32 {vt[2]}, {vt[2]}, {vt[3]}")
    A(f"s_lshl_b32 {sT[1]}, {sT[0]}, 16")
    A(f"v_add_u32 {vt[2]}, {sT[1]}, {vt[2]}")
    A(f"v_lshlrev_b32 {vt[0]}, 3, {vLane}")
    A(f"ds_write_b64 {vt[0]}, {vt[2:4]} offset:{SEG}")
    A(f"v_and_b32 {vw[0]}, 0xffff, {vt[2]}")
    A(f"v_add_u32 {vt[1]}, {vw[0]}, {vt[1]}")
    A(f"v_lshrrev_b32 {vw[1]}, 16, {vt[2]}")
    A(f"v_sub_u32 {vw[1]}, {vw[1]}, {vt[1]}")
    A(f"v_lshl_or_b32 {vw[1]}, {vw[1]}, 16, {vt[1]}")
    A(f"v_lshlrev_b32 {vw[1]}, 3, {vw[1]}")
    A(f"v_lshlrev_b32 {vw[0]}, 3, {vw[0]}")
    for i in range(1, 4):
        A(f"v_add_u32 {vw[2*i]}, {vw[0]}, {vc[i-1]}")
        A(f"v_mov_b32 {vw[2*i+1]}, {vw[1]}")
    A(f"v_lshlrev_b32 {vt[0]}, 5, {vLane}")
    A(f"ds_write_b128 {vt[0]}, {vw[0:4]} offset:{TBL}")
    A(f"ds_write_b128 {vt[0]}, {vw[4:8]} offset:{TBL+16}")
    A(f"s_lshr_b32 {sT[1]}, {sT[0]}, 16")
    A(f"s_and_b32 {sT[0]}, {sT[0]}, 0xffff")
    A(f"s_add_u32 {sT[0]}, {sT[0]}, {sT[1]}")
    A(f"s_cmp_le_u32 {sT[0]}, {CAP//8}")
    A("s_cbranch_scc1 K2_fits")
    A(f"v_mov_b32 {vt[0]}, 0")
    A(f"ds_write_b32 {vt[0]}, {vOne} offset:{MISC}")
    A("K2_fits:")
    A("s_waitcnt lgkmcnt(0)")
    A("K2_noscan:")
    A("s_barrier")
    ts()
    vT = vw
    A(f"v_mov_b32 {vt[0]}, 0")
    A(f"ds_read_b32 {vt[0]}, {vt[0]} offset:{MISC}")
    A(f"s_mul_i32 {sT[0]}, {sWave}, 24")
    A(f"v_lshl_add_u32 {vt[1]}, {vLane}, 3, {sT[0]}")
    A(f"ds_read_b64 {vt[2:4]}, {vt[1]} offset:{SEG}")
    for r in range(4):
        byte0(vKa[r], 3, vKey[r])
        A(f"ds_read_b64 {vT[2*r:2*r+2]}, {vKa[r]} offset:{TBL}")
    A(f"s_waitcnt lgkmcnt({0 if o.get('k2safe') else 4})")
    A(f"v_readfirstlane_b32 {sT[0]}, {vt[0]}")
    A(f"v_readlane_b32 {sNxt}, {vt[2]}, 0")
    for a in range(3): A(f"v_readlane_b32 {sPk[a]}, {vt[3]}, {a}")
    A(f"s_cmp_gt_u32 {sT[0]}, {sSlow}")
    A("s_cbranch_scc1 K2_toslow")
    def place(r, key, rk, pay, msk, first):
        A(f"s_mov_b64 exec, {msk}")
        A(f"v_add_u32 {rk}, {rk}, {vT[2*r]}")
        A(f"v_cmp_ge_u32_sdwa vcc, {rk}, {vT[2*r+1]} src0_sel:DWORD src1_sel:WORD_0")
        A(f"v_lshrrev_b32 {vt[0]}, 16, {vT[2*r+1]}")
        A(f"s_nop 0")
        A(f"v_cndmask_b32 {vt[0]}, 0, {vt[0]}, vcc")
        A(f"v_add_lshl_u32 {rk}, {rk}, {vt[0]}, 2")
        A(f"ds_write_b32 {rk}, {key} offset:{KEY}")
        A(f"v_lshlrev_b32 {rk}, 2, {rk}")
    for r in range(4):
        A(f"s_waitcnt lgkmcnt({3-r})")
        place(r, vKey[r], vRk[r], None, sM0[2*r:2*r+2], True)
    A(f"s_cmp_eq_u64 {sAny1}, 0")
    A("s_cbranch_scc1 K2_noh1c")
    for r in range(4):
        A(f"s_mov_b64 exec, {sM1[2*r:2*r+2]}")
        A(f"s_cbranch_execz K2_noh1c_{r}")
        byte0(vt[1], 3, vKey[4+r])
        A(f"ds_read_b64 {vT[2*r:2*r+2]}, {vt[1]} offset:{TBL}")
        A("s_waitcnt lgkmcnt(0)")
        place(r, vKey[4+r], vRk[4+r], None, sM1[2*r:2*r+2], False)
        A(f"ds_write_b128 {vRk[4+r]}, {vP[16+4*r:20+4*r]} offset:{PAY}")
        A(f"K2_noh1c_{r}:")
    A("K2_noh1c:")
    for r in range(4):
        A(f"s_mov_b64 exec, {sM0[2*r:2*r+2]}")
        A(f"s_waitcnt vmcnt({3-r})")
        A(f"ds_write_b128 {vRk[r]}, {vP[4*r:4*r+4]} offset:{PAY}")
    A("s_mov_b64 exec, -1")
    hiP = V.n
    vEsave = vE
    V.reset(mV)
    vu = V.alloc(4, 2)
    vRow = V.alloc(); vTr = V.alloc(2); vKc = V.alloc(); vPc = V.alloc(); vEc = V.alloc()
    vKad = V.alloc(); vPad = V.alloc(); vEad = V.alloc()
    vK4 = V.alloc(4, 2); vAd = V.alloc(4); vX = V.alloc(16, 2); vSh = V.alloc(4, 2); vEa = V.alloc(2, 2); vCf = V.alloc(8, 2); vB = V.alloc(4, 2)
    A("s_waitcnt lgkmcnt(0)")
    A.c("lane constants of the main loop")
    A(f"v_and_b32 {vRow}, 31, v0")
    A(f"v_lshrrev_b32 {vu[0]}, 2, {vRow}")
    A(f"v_and_b32 {vu[0]}, 4, {vu[0]}")
    A(f"v_xor_b32 {vRow}, {vRow}, {vu[0]}")
    A(f"v_lshlrev_b32 {vRow}, 4, {vRow}")
    A(f"v_bfe_u32 {vu[0]}, v0, 4, 2")
    A(f"v_bfe_u32 {vu[1]}, v0, 2, 2")
    A(f"v_and_b32 {vu[2]}, 3, v0")
    A(f"v_mul_u32_u24 {vu[3]}, 1056, {vu[0]}")
    A(f"v_lshl_add_u32 {vu[3]}, {vu[1]}, 7, {vu[3]}")
    A(f"v_lshl_add_u32 {vu[3]}, {vu[2]}, 3, {vu[3]}")
    A(f"v_add_u32 {vu[3]}, {sRing[0]}, {vu[3]}")
    A(f"v_lshrrev_b32 {vu[1]}, 1, {vu[1]}")
    A(f"v_lshlrev_b32 {vu[1]}, 6, {vu[1]}")
    A(f"v_add_u32 {vTr[0]}, {vu[3]}, {vu[1]}")
    A(f"v_xor_b32 {vu[1]}, 64, {vu[1]}")
    A(f"v_add_u32 {vTr[1]}, {vu[3]}, {vu[1]}")
    A(f"v_bfe_u32 {vKc}, v0, 5, 1")
    A(f"v_lshlrev_b32 {vKc}, 4, {vKc}")
    A(f"v_lshlrev_b32 {vPc}, 4, {vu[0]}")
    A(f"v_lshl_add_u32 {vEc}, {vu[2]}, 1, {vPc}")
    A(f"s_lshr_b32 {sSt1}, {sNxt}, 16")
    A(f"s_and_b32 {sNxt}, {sNxt}, 0xffff")
    A(f"s_add_u32 {sT[0]}, {sPk[0]}, {sPk[1]}")
    A(f"s_add_u32 {sT[0]}, {sT[0]}, {sPk[2]}")
    A(f"s_lshr_b32 {sT[1]}, {sT[0]}, 16")
    A(f"s_and_b32 {sT[0]}, {sT[0]}, 0xffff")
    A(f"s_add_u32 {sEnd0}, {sNxt}, {sT[0]}")
    A(f"s_add_u32 {sRem}, {sT[0]}, {sT[1]}")
    A(f"s_cmp_eq_u32 {sNxt}, {sEnd0}")
    A(f"s_cselect_b32 {sNxt}, {sSt1}, {sNxt}")
    A("s_barrier")
    ts()
    A(f"s_cmp_eq_u32 {sRem}, 0")
    A("s_cbranch_scc1 K2_done")
    def rd_keys():
        A(f"s_lshl_b32 {sKo}, {sNxt}, 5")
        A(f"v_add_u32 {vKad}, {sKo}, {vKc}")
        A(f"ds_read_b128 {vK4}, {vKad} offset:{KEY}")
    def rd_pay():
        A(f"s_lshl_b32 {sPo}, {sNxt}, 7")
        A(f"v_add_u32 {vPad}, {sPo}, {vPc}")
        A(f"v_add_u32 {vEad}, {sPo}, {vEc}")
        A(f"ds_read_b64 {vSh[0:2]}, {vPad} offset:{PAY}")
        A(f"ds_read_b64 {vSh[2:4]}, {vPad} offset:{PAY+64}")
        A(f"ds_read_u16_d16_hi {vEa[0]}, {vEad} offset:{PAY+8}")
        A(f"ds_read_u16_d16_hi {vEa[1]}, {vEad} offset:{PAY+72}")
    def adv():
        A(f"s_add_u32 {sNxt}, {sNxt}, 1")
        A(f"s_cmp_eq_u32 {sNxt}, {sEnd0}")
        A(f"s_cselect_b32 {sNxt}, {sSt1}, {sNxt}")
    def addrs():
        for k in range(4):
            A(f"v_mad_u32_u16 {vAd[k]}, {vK4[k]}, {s512}, {vRow} op_sel:[1,0,0,0]")
    def dma():
        for k in range(4):
            A(f"s_mov_b32 m0, {sRing[k]}")
            A("s_nop 0")
            A(f"buffer_load_dwordx4 {vAd[k]}, {rX}, 0 offen lds")
    def coef():
        A(f"v_mfma_f32_4x4x4_16b_bf16 {vCf[0:4]}, {vCg}, {vSh[0:2]}, 0")
        A(f"v_mfma_f32_4x4x4_16b_bf16 {vCf[4:8]}, {vCg}, {vSh[2:4]}, 0")
        addrs()
        A("s_nop 7" if o.get('msafe') else "s_nop 0")
        A(f"v_pk_mul_f32 {vCf[0:2]}, {vCf[0:2]}, {vEa} op_sel_hi:[1,0]")
        A(f"v_pk_mul_f32 {vCf[2:4]}, {vCf[2:4]}, {vEa} op_sel_hi:[1,0]")
        A(f"v_pk_mul_f32 {vCf[4:6]}, {vCf[4:6]}, {vEa} op_sel:[0,1]")
        A(f"v_pk_mul_f32 {vCf[6:8]}, {vCf[6:8]}, {vEa} op_sel:[0,1]")
        for i in range(4): A(f"v_cvt_pk_bf16_f32 {vB[i]}, {vCf[2*i]}, {vCf[2*i+1]}")
    rd_keys()
    rd_pay()
    A(f"s_waitcnt lgkmcnt({0 if o.get('msafe') else 4})")
    addrs()
    dma()
    adv()
    rd_keys()
    A("s_waitcnt lgkmcnt(0)")
    coef()
    A(f"s_mov_b32 {sPh}, 0")
    A("K2_phase:")
    for a in range(3):
        A(f"s_and_b32 {sCnt}, {sPk[a]}, 0xffff")
        A(f"s_cbranch_scc0 K2_seg{a}_end")
        A(f"K2_seg{a}:")
        A("s_waitcnt vmcnt(0)")
        if o.get('dsafe'): A("s_nop 15\ns_nop 15")
        for t in range(4):
            for h in range(2):
                A(f"ds_read_b64_tr_b16 {vX[4*t+2*h:4*t+2*h+2]}, {vTr[t>>1]} offset:{h*512 + (t&1)*32}")
        A(f"s_sub_u32 {sRem}, {sRem}, 1")
        A(f"s_cmp_eq_u32 {sRem}, 0")
        A("s_waitcnt lgkmcnt(0)")
        A(f"s_cbranch_scc1 K2_seg{a}_last")
        dma()
        rd_pay()
        adv()
        rd_keys()
        for t in range(4):
            A(f"v_mfma_f32_16x16x32_bf16 {vAcc[16*a+4*t:16*a+4*t+4]}, {vX[4*t:4*t+4]}, {vB}, {vAcc[16*a+4*t:16*a+4*t+4]}")
        A("s_waitcnt lgkmcnt(0)")
        coef()
        A(f"s_sub_u32 {sCnt}, {sCnt}, 1")
        A(f"s_cmp_lg_u32 {sCnt}, 0")
        A(f"s_cbranch_scc1 K2_seg{a}")
        A(f"K2_seg{a}_end:")
        A(f"s_lshr_b32 {sPk[a]}, {sPk[a]}, 16")
    A(f"s_add_u32 {sPh}, {sPh}, 1")
    A(f"s_cmp_lt_u32 {sPh}, 2")
    A("s_cbranch_scc1 K2_phase")
    A("s_branch K2_done")
    for a in range(3):
        A(f"K2_seg{a}_last:")
        for t in range(4):
            A(f"v_mfma_f32_16x16x32_bf16 {vAcc[16*a+4*t:16*a+4*t+4]}, {vX[4*t:4*t+4]}, {vB}, {vAcc[16*a+4*t:16*a+4*t+4]}")
        if a < 2: A("s_branch K2_done")
    A("K2_done:")
    if o.get('esafe'): A("s_nop 15\ns_nop 15\ns_nop 15")
    ts()
    A(f"s_cmp_lg_u32 {sSlow}, 0")
    A("s_cbranch_scc1 K2_nextround")
    A("K2_epi:")
    A(f"s_cmp_ge_u32 {sWave}, 14")
    A("s_cbranch_scc1 K2_fin")
    V.reset(mV)
    vu = V.alloc(2, 2); vW = V.alloc(32, 2); vWf = V.alloc(16, 2); vA = V.alloc(8, 2); vo = V.alloc(2, 2)
    A(f"v_lshlrev_b32 {vu[0]}, 4, {vLane}")
    for i in range(4):
        A(f"ds_read_b128 {vWf[4*i:4*i+4]}, {vu[0]} offset:{WRF + 1024*i}")
    for i in range(8):
        A(f"ds_read_b128 {vW[4*i:4*i+4]}, {vu[0]} offset:{WOP + 1024*i}")
    A(f"v_lshlrev_b32 {vu[1]}, 3, {vLane}")
    A(f"s_mul_i32 {sT[0]}, {sWave}, 3")
    A(f"s_add_u32 {sT[0]}, {sT[0]}, {sN0}")
    A("s_waitcnt lgkmcnt(0)")
    for a in range(3):
        A(f"s_cmp_ge_u32 {sT[0]}, {sN1}")
        A("s_cbranch_scc1 K2_fin")
        acc = vAcc[16*a:16*a+16]
        for i in range(8):
            A(f"v_pk_mul_f32 {acc[2*i:2*i+2]}, {acc[2*i:2*i+2]}, {vWf[2*i:2*i+2]}")
        for i in range(8):
            A(f"v_cvt_pk_bf16_f32 {vA[i]}, {acc[2*i]}, {acc[2*i+1]}")
        A(f"s_lshl_b32 {sT[1]}, {sT[0]}, 9")
        A(f"s_add_u32 {sT[0]}, {sT[0]}, 1")
        for tau in range(4):
            A(f"v_mfma_f32_16x16x32_bf16 {acc[4*tau:4*tau+4]}, {vA[0:4]}, {vW[4*tau:4*tau+4]}, 0")
        for tau in range(4):
            A(f"v_mfma_f32_16x16x32_bf16 {acc[4*tau:4*tau+4]}, {vA[4:8]}, {vW[16+4*tau:20+4*tau]}, {acc[4*tau:4*tau+4]}")
        A("s_nop 15" if o.get('esafe') else "s_nop 4")
        for tau in range(4):
            A(f"v_pk_add_f32 {acc[4*tau:4*tau+2]}, {acc[4*tau:4*tau+2]}, {acc[4*tau+2:4*tau+4]}")
            A(f"v_add_f32 {acc[4*tau]}, {acc[4*tau]}, {acc[4*tau+1]}")
        A(f"v_cvt_pk_bf16_f32 {vo[0]}, {acc[0]}, {acc[4]}")
        A(f"v_cvt_pk_bf16_f32 {vo[1]}, {acc[8]}, {acc[12]}")
        A(f"buffer_store_dwordx2 {vo}, {vu[1]}, {rO}, {sT[1]} offen")
    A("K2_fin:")
    if o.get('ts'):
        ts()
        A("s_waitcnt vmcnt(0)")
        ts()
        ts.flush(vu[0], sWave, rW)
    A("K2_end:")
    A("s_endpgm")
    A("K2_toslow:")
    A.c("some run is long or the bin is too full: redo in rounds of (64 runs x 32 records)")
    A("s_waitcnt vmcnt(0) lgkmcnt(0)")
    for r in range(4):
        A(f"v_lshrrev_b32 {vt[1]}, 16, {vE[r]}")
        A(f"v_and_b32 {vt[2]}, 0xffff, {vE[r]}")
        A(f"v_sub_u32 {vt[1]}, {vt[1]}, {vt[2]}")
        if r == 0: A(f"v_mov_b32 {vt[0]}, {vt[1]}")
        else: A(f"v_max_u32 {vt[0]}, {vt[0]}, {vt[1]}")
    A(f"v_mov_b32 {vt[1]}, 0")
    A(f"ds_max_u32 {vt[1]}, {vt[0]} offset:{MISC+4}")
    A("s_waitcnt lgkmcnt(0)")
    A("s_barrier")
    A(f"ds_read_b32 {vt[0]}, {vt[1]} offset:{MISC+4}")
    A("s_waitcnt lgkmcnt(0)")
    A(f"v_readfirstlane_b32 {sMaxN}, {vt[0]}")
    A(f"s_mov_b32 {sSlow}, 1")
    A("s_barrier")
    A("s_branch K2_round")
    A("K2_nextround:")
    A(f"s_add_u32 {sBase}, {sBase}, 32")
    A(f"s_cmp_lt_u32 {sBase}, {sMaxN}")
    A("s_cbranch_scc1 K2_again")
    A(f"s_mov_b32 {sBase}, 0")
    A(f"s_add_u32 {sR}, {sR}, 1")
    A(f"s_cmp_ge_u32 {sR}, 4")
    A("s_cbranch_scc1 K2_epi")
    A("K2_again:")
    A("s_waitcnt vmcnt(0) lgkmcnt(0)")
    A("s_barrier")
    A("s_branch K2_round")
    return A.text() + kd(name, V.hi, S.hi), LDS

HEAD = open("gather_scatter__tensor_product_equiv_mace__graph.s.ref").read().split("; Override launch")[0]

def build(o):
    k1, l1 = gen_k1(o); k2, l2 = gen_k2(o)
    t = HEAD
    t += f"; @launch kernel=part_kernel grid=(256,1,1) block=(640,1,1) lds={l1}\n"
    t += f"; @launch kernel=gather_scatter__tensor_product_equiv_mace__graph_kernel grid=(256,1,1) block=(1024,1,1) lds={l2}\n"
    t += '.amdgcn_target "amdgcn-amd-amdhsa--gfx950"\n.text\n' + k1 + k2
    return t

if __name__ == "__main__":
    o = dict(pf=0.6)
    for a in sys.argv[2:]:
        k, v = a.split("=")
        try: v = eval(v)
        except Exception: pass
        o[k] = v
    open(sys.argv[1], "w").write(build(o))
```

```python
import sys
from asmlib import *

N = 10000; E = 640000; CH = 2500
REG = 53248
TAB = 256 * REG
WSB = TAB + 256 * 1024
MAGIC = 429497
TSB = 0x1000000

class Stamps:
    def __init__(self, A, S, on, which, n=9):
        self.A = A; self.on = on; self.k = 0; self.which = which; self.n = n
        if on: self.r = S.alloc(2 * n, 2)
    def __call__(self):
        if self.on:
            self.A(f"s_memrealtime {self.r[2*self.k:2*self.k+2]}")
            self.k += 1
    def init(self, ws):
        self.ws = ws
        if self.on:
            for i in range(2, 2 * self.n, 2): self.A(f"s_mov_b32 {self.r[i]}, 0")
    def flush(self, vt, swave, d):
        if not self.on: return
        A = self.A
        if self.on == 2:
            A(f"s_load_dwordx2 {self.ws}, s[0:1], 72")
            A("s_waitcnt lgkmcnt(0)")
            srd(A, d, self.ws, 256)
            A("s_mov_b64 exec, 1")
            sel = [0, 1, 2, 3, 4, 5, 6, 7] if self.which == 0 else [0, 1, 2, 4, 5, 6, 7, 8]
            for j, i in enumerate(sel):
                A(f"v_mov_b32 {vt}, {self.r[2*i]}")
                A(f"buffer_atomic_umax {vt}, off, {d}, 0 offset:{4*j}")
                A("s_nop 1")
                A(f"v_not_b32 {vt}, {self.r[2*i]}")
                A(f"buffer_atomic_umax {vt}, off, {d}, 0 offset:{32+4*j}")
                A("s_nop 1")
            return
        A("s_waitcnt lgkmcnt(0)")
        srd(A, d, self.ws, 0x10000000)
        A("s_mov_b64 exec, 1")
        A(f"s_lshl_b32 s3, s2, 4")
        A(f"s_add_u32 s3, s3, {swave}")
        A(f"s_lshl_b32 s3, s3, 6")
        A(f"s_add_u32 s3, s3, {TSB + self.which * 0x100000}")
        for i in range(12):
            A(f"v_mov_b32 {vt}, {self.r[2*i] if i < self.n else 0}")
            A(f"buffer_store_dword {vt}, off, {d}, s3 offset:{4*i}")
            A("s_nop 1")

def gen_k1(o):
    name = "part_kernel"
    A = Asm(); V = Regs("v", 1, 128); S = Regs("s", 4, 100)
    STAGE = 0; CNT = REG; ENT = CNT + 1024; UW = ENT + 1024; LDS = UW + 16
    ldp = o.get('k1_ld', 'nt'); stp = o.get('k1_st', '')
    A(f".globl {name}\n.p2align 8\n.type {name},@function\n{name}:")
    sP = S.alloc(16, 4); sWS = S.alloc(2, 2)
    sX, sSrc, sDst, sSh, sEa = sP[0:2], sP[2:4], sP[4:6], sP[6:8], sP[8:10]
    rOut = S.alloc(4, 4); rTab = S.alloc(4, 4); rX = S.alloc(4, 4)
    sAct = S.alloc(2, 2); sM = S.alloc(); s625 = S.alloc(); sT = S.alloc(); sWave = S.alloc(); s16 = S.alloc()
    ts = Stamps(A, S, o.get('ts'), 0)
    A("s_cmp_ge_u32 s2, 256")
    A("s_cbranch_scc1 K1_end")
    ts()
    A(f"s_load_dwordx16 {sP}, s[0:1], 0")
    A(f"s_load_dwordx2 {sWS}, s[0:1], 80")
    vo4 = V.alloc(2); vo8 = V.alloc(2); vt = V.alloc(4, 2); vOne = V.alloc()
    vD = V.alloc(4, 2); vS = V.alloc(4, 2); vSh = V.alloc(8, 2); vEa = V.alloc(8, 2)
    vC = V.alloc(4); vRk = V.alloc(4); vKey = V.alloc(4); vEnt = V.alloc(4); vPf = V.alloc(2)
    A.c("zero the bin counters")
    A(f"v_lshlrev_b32 {vt[0]}, 2, v0")
    A(f"v_mov_b32 {vt[1]}, 0")
    A(f"v_cmp_gt_u32 vcc, 256, v0")
    A(f"s_and_saveexec_b64 {sAct}, vcc")
    A(f"ds_write_b32 {vt[0]}, {vt[1]} offset:{CNT}")
    A(f"s_mov_b64 exec, {sAct}")
    A(f"v_lshrrev_b32 {vt[2]}, 6, v0")
    A(f"s_mul_i32 {sT}, s2, {CH*4}")
    A(f"v_readfirstlane_b32 {sWave}, {vt[2]}")
    A(f"v_lshl_add_u32 {vo4[0]}, v0, 3, {sT}")
    A(f"v_add_u32 {vo4[1]}, {CH*2}, {vo4[0]}")
    A(f"v_lshlrev_b32 {vo8[0]}, 1, {vo4[0]}")
    A(f"v_lshlrev_b32 {vo8[1]}, 1, {vo4[1]}")
    A(f"v_mov_b32 {vOne}, 4")
    A(f"s_mov_b32 {sM}, {MAGIC}")
    A(f"s_movk_i32 {s625}, 625")
    A(f"s_movk_i32 {s16}, 16")
    A(f"v_cmp_gt_u32 vcc, {CH//4}, v0")
    A(f"s_waitcnt lgkmcnt(0)")
    A(f"s_mov_b64 {sAct}, vcc")
    A(f"s_mov_b64 exec, vcc")
    A(f"global_load_dwordx2 {vD[0:2]}, {vo4[0]}, {sDst} {ldp}")
    A(f"global_load_dwordx2 {vD[2:4]}, {vo4[1]}, {sDst} {ldp}")
    A(f"global_load_dwordx2 {vS[0:2]}, {vo4[0]}, {sSrc} {ldp}")
    A(f"global_load_dwordx2 {vS[2:4]}, {vo4[1]}, {sSrc} {ldp}")
    A(f"global_load_dwordx4 {vSh[0:4]}, {vo8[0]}, {sSh} {ldp}")
    A(f"global_load_dwordx4 {vEa[0:4]}, {vo8[0]}, {sEa} {ldp}")
    A(f"global_load_dwordx4 {vSh[4:8]}, {vo8[1]}, {sSh} {ldp}")
    A(f"global_load_dwordx4 {vEa[4:8]}, {vo8[1]}, {sEa} {ldp}")
    A("s_mov_b64 exec, -1")
    ts.init(sWS)
    A(f"s_mul_i32 {sT}, s2, {REG}")
    A(f"s_add_u32 {rOut[0]}, {sWS[0]}, {sT}")
    A(f"s_addc_u32 {rOut[1]}, {sWS[1]}, 0")
    A(f"s_and_b32 {rOut[1]}, {rOut[1]}, 0xffff")
    A(f"s_mov_b32 {rOut[2]}, 0")
    A(f"s_mov_b32 {rOut[3]}, 0x20000")
    srd(A, rTab, sWS, WSB)
    npf = 0
    pf = o.get('pf', 0.0)
    if pf > 0:
        A.c("touch the leading part of x so that it is in this die's L2 when the gather starts (speed only)")
        lines = int(pf * 40000) // 32
        srd(A, rX, sX, N * 512)
        A(f"s_lshr_b32 {sT}, s2, 3")
        A(f"s_mul_i32 {sT}, {sT}, {lines*128}")
        A(f"v_lshlrev_b32 {vt[0]}, 7, v0")
        for k in range((lines + 639) // 640):
            rem = lines - 640 * k
            if rem < 640:
                A(f"v_cmp_gt_u32 vcc, {rem}, v0")
                A(f"s_or_b64 exec, vcc, 1")
            A(f"buffer_load_dword {vPf[0]}, {vt[0]}, {rX}, {sT} offen")
            A(f"s_add_u32 {sT}, {sT}, {640*128}")
            npf += 1
        A("s_mov_b64 exec, -1")
        rest = 40000 - lines * 32
        if rest > 0 and o.get('pfrest', 1):
            per = (rest + 255) // 256
            A(f"s_mul_i32 {sT}, s2, {per*128}")
            A(f"s_add_u32 {sT}, {sT}, {lines*32*128}")
            A(f"v_cmp_gt_u32 vcc, {per}, v0")
            A(f"s_or_b64 exec, vcc, 1")
            A(f"buffer_load_dword {vPf[1]}, {vt[0]}, {rX}, {sT} offen nt")
            A("s_mov_b64 exec, -1")
            npf += 1
    A("s_barrier")
    A(f"s_mov_b64 exec, {sAct}")
    A(f"s_waitcnt vmcnt({0 if o.get('k1safe') else 6 + npf})")
    ts()
    for e in range(4):
        A(f"v_mul_u32_u24 {vt[0]}, {sM}, {vD[e]}")
        A(f"v_lshlrev_b32_sdwa {vC[e]}, 2, {vt[0]} dst_sel:DWORD dst_unused:UNUSED_PAD src0_sel:DWORD src1_sel:BYTE_3")
        A(f"ds_add_rtn_u32 {vRk[e]}, {vC[e]}, {vOne} offset:{CNT}")
    for e in range(4):
        A(f"v_mad_u32_u24 {vt[0]}, {vC[e]}, {s625}, 60")
        A(f"v_lshrrev_b32 {vt[0]}, 6, {vt[0]}")
        A(f"v_sub_u32 {vD[e]}, {vD[e]}, {vt[0]}")
    A(f"s_waitcnt lgkmcnt(0)")
    A("s_barrier")
    ts()
    A("s_mov_b64 exec, -1")
    A(f"s_cmp_lg_u32 {sWave}, 9")
    A("s_cbranch_scc1 K1_noscan")
    A.c("wave 9: run sizes (payload units + key units), exclusive scan, entries {first unit, first key unit}")
    m = V.mark()
    vc = V.alloc(4, 2); vz = V.alloc(4); vi = V.alloc(); vl = V.alloc(); ve = V.alloc(4, 2); vg = V.alloc(4, 2)
    A(f"v_and_b32 {vl}, 63, v0")
    A(f"v_lshlrev_b32 {vl}, 4, {vl}")
    A(f"ds_read_b128 {vc}, {vl} offset:{CNT}")
    A(f"s_lshl_b32 {sT}, s2, 10")
    A(f"s_add_u32 {sT}, {sT}, {TAB}")
    A("s_waitcnt lgkmcnt(0)")
    for i in range(4):
        A(f"v_add_u32 {vz[i]}, 12, {vc[i]}")
        A(f"v_lshrrev_b32 {vc[i]}, 2, {vc[i]}")
        A(f"v_lshrrev_b32 {vz[i]}, 4, {vz[i]}")
    A(f"v_add_u32 {vz[0]}, {vz[0]}, {vc[0]}")
    for i in range(1, 4):
        A(f"v_add3_u32 {vz[i]}, {vz[i]}, {vc[i]}, {vz[i-1]}")
    A(f"v_mov_b32 {vi}, {vz[3]}")
    scan64(A, vi)
    A(f"v_sub_u32 {ve[0]}, {vi}, {vz[3]}")
    for i in range(1, 4):
        A(f"v_add_u32 {ve[i]}, {ve[0]}, {vz[i-1]}")
    for i in range(4):
        A(f"v_add_u32 {vc[i]}, {vc[i]}, {ve[i]}")
        A(f"v_lshl_or_b32 {vg[i]}, {vc[i]}, 16, {ve[i]}")
    A(f"ds_write_b128 {vl}, {vg} offset:{ENT}")
    A(f"buffer_store_dwordx4 {vg}, {vl}, {rTab}, {sT} offen {stp}")
    A(f"s_mov_b64 exec, 0x8000000000000000" if False else f"s_mov_b32 exec_lo, 0\ns_mov_b32 exec_hi, 0x80000000")
    A(f"v_mov_b32 {vl}, 0")
    A(f"ds_write_b32 {vl}, {vi} offset:{UW}")
    A("s_mov_b64 exec, -1")
    A("s_waitcnt lgkmcnt(0)")
    V.reset(m)
    A("K1_noscan:")
    A(f"s_mov_b64 exec, {sAct}")
    A(f"s_waitcnt vmcnt({4 + npf})")
    for e in range(4):
        A(f"v_mul_u32_u24 {vt[0]}, {sM}, {vS[e]}")
        A(f"v_alignbit_b32 {vt[0]}, {vD[e]}, {vt[0]}, 30")
        A(f"v_lshl_or_b32 {vKey[e]}, {vS[e]}, 16, {vt[0]}")
    A("s_barrier")
    ts()
    for e in range(4):
        A(f"ds_read_b32 {vEnt[e]}, {vC[e]} offset:{ENT}")
    A(f"v_mov_b32 {vt[3]}, 0")
    A(f"ds_read_b32 {vt[3]}, {vt[3]} offset:{UW}")
    for e in range(4):
        A(f"s_waitcnt lgkmcnt({0 if o.get('k1safe') else 4})")
        A(f"v_mad_u32_u16 {vt[0]}, {vEnt[e]}, {s16}, {vRk[e]} op_sel:[1,0,0,0]")
        A(f"ds_write_b32 {vt[0]}, {vKey[e]} offset:{STAGE}")
        A(f"v_lshlrev_b32 {vRk[e]}, 2, {vRk[e]}")
        A(f"v_mad_u32_u16 {vC[e]}, {vEnt[e]}, {s16}, {vRk[e]}")
    A(f"s_waitcnt vmcnt({2 + npf})")
    for e in range(2):
        A(f"ds_write2_b64 {vC[e]}, {vSh[2*e:2*e+2]}, {vEa[2*e:2*e+2]} offset0:0 offset1:1")
    A(f"s_waitcnt vmcnt({npf})")
    ts()
    for e in range(2, 4):
        A(f"ds_write2_b64 {vC[e]}, {vSh[2*e:2*e+2]}, {vEa[2*e:2*e+2]} offset0:0 offset1:1")
    A("s_waitcnt lgkmcnt(0)")
    A(f"v_readfirstlane_b32 {sT}, {vt[3]}")
    A("s_mov_b64 exec, -1")
    A(f"v_lshlrev_b32 {vt[0]}, 4, v0")
    A(f"s_lshl_b32 {rOut[2]}, {sT}, 4")
    A("s_barrier")
    ts()
    vO = V.alloc(24, 2)
    for k in range(5):
        A(f"ds_read_b128 {vO[4*k:4*k+4]}, {vt[0]} offset:{STAGE + k*10240}")
    A(f"s_cmp_gt_u32 {sWave}, 1")
    A("s_cbranch_scc1 K1_no6")
    A(f"ds_read_b128 {vO[20:24]}, {vt[0]} offset:{STAGE + 5*10240}")
    A(f"s_mov_b32 {sT}, {5*10240}")
    A("s_waitcnt lgkmcnt(0)")
    A(f"buffer_store_dwordx4 {vO[20:24]}, {vt[0]}, {rOut}, {sT} offen {stp}")
    A("K1_no6:")
    for k in range(5):
        A(f"s_mov_b32 {sT}, {k*10240}")
        A(f"s_waitcnt lgkmcnt({0 if o.get('k1safe') else 4-k})")
        A(f"buffer_store_dwordx4 {vO[4*k:4*k+4]}, {vt[0]}, {rOut}, {sT} offen {stp}")
    if o.get('ts'):
        ts()
        A("s_waitcnt vmcnt(0)")
        ts()
        ts.flush(vt[1], sWave, rTab)
    A("K1_end:")
    A("s_endpgm")
    return A.text() + kd(name, V.hi, S.hi), LDS

def gen_k2(o):
    name = "gather_scatter__tensor_product_equiv_mace__graph_kernel"
    A = Asm(); V = Regs("v", 1, 128); S = Regs("s", 4, 102)
    CAP = 3072
    CNT = 0; TBL = 1024; SEG = 3072; MISC = 3584; WOP = 4096; WRF = WOP + 8192; KEY = WRF + 4096
    PAY = KEY + CAP * 4 + 128; RING = PAY + CAP * 16 + 128; LDS = RING + 14 * 4224
    assert RING % 64 == 0 and PAY < 65536 - 256 and LDS <= 163840
    ldp = o.get('k2_ld', 'nt')
    A(f".globl {name}\n.p2align 8\n.type {name},@function\n{name}:")
    sXp = S.alloc(2, 2); sQ = S.alloc(8, 4); sWS = S.alloc(2, 2)
    sCg, sWr, sWo, sOut = sQ[0:2], sQ[2:4], sQ[4:6], sQ[6:8]
    rX = S.alloc(4, 4); rW = S.alloc(4, 4); rO = S.alloc(4, 4)
    sWave = S.alloc(); sBin = S.alloc(); sN0 = S.alloc(); sN1 = S.alloc(); sT = S.alloc(2, 2)
    sSlow = S.alloc(); sR = S.alloc(); sBase = S.alloc(); sMaxN = S.alloc()
    sCo = S.alloc(4); s16 = S.alloc(); s512 = S.alloc()
    sM0 = S.alloc(8, 2); sM1 = S.alloc(8, 2); sEn = S.alloc(2, 2); sAny1 = S.alloc(2, 2)
    sPk = S.alloc(3); sNxt = S.alloc(); sEnd0 = S.alloc(); sSt1 = S.alloc(); sRem = S.alloc(); sCnt = S.alloc(); sPh = S.alloc()
    sRing = S.alloc(4); sKo = S.alloc(); sPo = S.alloc()
    ts = Stamps(A, S, o.get('ts'), 1)
    A("s_cmp_ge_u32 s2, 256")
    A("s_cbranch_scc1 K2_end")
    ts()
    A(f"s_load_dwordx2 {sWS}, s[0:1], 80")
    A(f"s_load_dwordx2 {sXp}, s[0:1], 0")
    A(f"s_load_dwordx8 {sQ}, s[0:1], 40")
    vLane = V.alloc(); vCg = V.alloc(2, 2); vAcc = V.alloc(48, 4)
    mV = V.mark()
    vt = V.alloc(4, 2); vI = V.alloc(); vChunk = V.alloc(); vK0 = V.alloc(); vOne = V.alloc()
    vE = V.alloc(4); vKa = V.alloc(4, 2); vRk = V.alloc(8); vPa = vRk[0:4]
    vKey = V.alloc(8); vP = V.alloc(32, 2)
    A(f"v_lshrrev_b32 {vt[0]}, 6, v0")
    A(f"v_and_b32 {vLane}, 63, v0")
    A(f"v_readfirstlane_b32 {sWave}, {vt[0]}")
    A(f"s_and_b32 {sBin}, s2, 7")
    A(f"s_lshl_b32 {sBin}, {sBin}, 5")
    A(f"s_lshr_b32 {sT[0]}, s2, 3")
    A(f"s_add_u32 {sBin}, {sBin}, {sT[0]}")
    A(f"s_mul_i32 {sN0}, {sBin}, 625")
    A(f"s_add_u32 {sN1}, {sN0}, {625+15}")
    A(f"s_add_u32 {sN0}, {sN0}, 15")
    A(f"s_lshr_b32 {sN0}, {sN0}, 4")
    A(f"s_lshr_b32 {sN1}, {sN1}, 4")
    A(f"s_mov_b32 {sSlow}, 0")
    A(f"s_mov_b32 {sR}, 0")
    A(f"s_mov_b32 {sBase}, 0")
    A(f"s_mov_b32 {sMaxN}, 0")
    A(f"s_movk_i32 {s16}, 16")
    A(f"s_movk_i32 {s512}, 512")
    for r in range(4): A(f"s_mov_b32 {sCo[r]}, {r*64*REG}")
    A(f"s_mul_i32 {sRing[0]}, {sWave}, 4224")
    A(f"s_add_u32 {sRing[0]}, {sRing[0]}, {RING}")
    for k in range(1, 4): A(f"s_add_u32 {sRing[k]}, {sRing[0]}, {1056*k}")
    for i in range(0, 48, 2): A(f"v_mov_b64 {vAcc[i:i+2]}, 0")
    A("s_waitcnt lgkmcnt(0)")
    srd(A, rW, sWS, WSB); srd(A, rX, sXp, N * 512); srd(A, rO, sOut, N * 512)
    ts.init(sWS)
    A("K2_round:")
    A.c("run table entries of this bin: lane group q = tid>>4 reads chunks q+64r")
    A(f"v_lshrrev_b32 {vChunk}, 4, v0")
    A(f"s_lshl_b32 {sT[0]}, {sBin}, 2")
    A(f"s_add_u32 {sT[0]}, {sT[0]}, {TAB}")
    A(f"v_lshl_add_u32 {vt[0]}, {vChunk}, 10, {sT[0]}")
    for r in range(4):
        A(f"s_mov_b32 {sT[1]}, {r*65536}")
        A(f"buffer_load_dword {vE[r]}, {vt[0]}, {rW}, {sT[1]} offen")
    A.c("constants (first round only)")
    A(f"s_cmp_lg_u32 {sSlow}, 0")
    A("s_cbranch_scc1 K2_noconst")
    A(f"v_and_b32 {vt[0]}, 3, v0")
    A(f"v_bfe_u32 {vt[1]}, v0, 2, 2")
    A(f"v_lshlrev_b32 {vt[2]}, 5, {vt[0]}")
    A(f"v_lshl_add_u32 {vt[2]}, {vt[1]}, 1, {vt[2]}")
    A(f"global_load_ushort {vCg[0]}, {vt[2]}, {sCg}")
    A(f"global_load_ushort {vKey[0]}, {vt[2]}, {sCg} offset:8")
    A(f"global_load_ushort {vCg[1]}, {vt[2]}, {sCg} offset:16")
    A(f"global_load_ushort {vKey[1]}, {vt[2]}, {sCg} offset:24")
    A(f"v_bfe_u32 {vt[1]}, v0, 4, 2")
    A(f"s_cmp_lt_u32 {sWave}, 13")
    A("s_cbranch_scc1 K2_now")
    A(f"s_cmp_gt_u32 {sWave}, 13")
    A("s_cbranch_scc1 K2_wout")
    A.c("wave 13: w_r as f32 in LDS, lane (g,w,k): wr[k][16t+4g+r]")
    A(f"v_lshlrev_b32 {vt[2]}, 7, {vt[0]}")
    A(f"v_lshl_add_u32 {vt[2]}, {vt[1]}, 3, {vt[2]}")
    for t in range(4):
        A(f"global_load_dwordx2 {vP[2*t:2*t+2]}, {vt[2]}, {sWr} offset:{32*t}")
    A(f"v_lshlrev_b32 {vt[0]}, 4, {vLane}")
    A("s_waitcnt vmcnt(0)")
    for t in range(4):
        for i in range(2):
            A(f"v_lshlrev_b32 {vP[16+4*t+2*i]}, 16, {vP[2*t+i]}")
            A(f"v_and_b32 {vP[16+4*t+2*i+1]}, 0xffff0000, {vP[2*t+i]}")
        A(f"ds_write_b128 {vt[0]}, {vP[16+4*t:20+4*t]} offset:{WRF + 1024*t}")
    A("s_branch K2_now")
    A("K2_wout:")
    A.c("waves 14,15: w_out as MFMA B operands in LDS. K-step s = wave-14; lane (g,n): W[32s+16(j>>2)+4g+(j&3)][4n+tau]")
    A(f"s_sub_u32 {sT[0]}, {sWave}, 14")
    A(f"s_lshl_b32 {sT[1]}, {sT[0]}, 12")
    A(f"v_and_b32 {vt[0]}, 15, v0")
    A(f"v_lshlrev_b32 {vt[0]}, 3, {vt[0]}")
    A(f"v_lshl_add_u32 {vt[0]}, {vt[1]}, 9, {vt[0]}")
    A(f"v_add_u32 {vt[0]}, {sT[1]}, {vt[0]}")
    for j in range(8):
        A(f"global_load_dwordx2 {vP[2*j:2*j+2]}, {vt[0]}, {sWo} offset:{2048*(j>>2) + 128*(j&3)}")
    A(f"v_lshl_add_u32 {vt[0]}, {vLane}, 4, {sT[1]}")
    A(f"s_mov_b32 {sT[0]}, 0x05040100")
    A(f"s_mov_b32 {sT[1]}, 0x07060302")
    A("s_waitcnt vmcnt(0)")
    for tau in range(4):
        for jj in range(4):
            A(f"v_perm_b32 {vP[16+4*tau+jj]}, {vP[2*(2*jj+1) + (tau>>1)]}, {vP[2*(2*jj) + (tau>>1)]}, {sT[tau&1]}")
        A(f"ds_write_b128 {vt[0]}, {vP[16+4*tau:20+4*tau]} offset:{WOP + 1024*tau}")
    A("K2_now:")
    A("K2_noconst:")
    A.c("LDS init: counters/flags 0, keys = out-of-range marker, payload 0")
    A(f"v_mov_b64 {vP[0:2]}, 0")
    A(f"v_mov_b64 {vP[2:4]}, 0")
    A(f"v_mov_b64 {vP[4:6]}, -1")
    A(f"v_mov_b64 {vP[6:8]}, -1")
    A(f"v_lshlrev_b32 {vt[0]}, 4, v0")
    for k in range(3):
        A(f"ds_write_b128 {vt[0]}, {vP[0:4]} offset:{PAY + 16384*k}")
    A(f"v_lshlrev_b32 {vt[1]}, 2, v0")
    A(f"ds_write_b32 {vt[1]}, {vP[0]} offset:{CNT}")
    A(f"v_cmp_gt_u32 vcc, {(CAP*4+128)//16}, v0")
    A(f"s_and_saveexec_b64 {sEn}, vcc")
    A(f"ds_write_b128 {vt[0]}, {vP[4:8]} offset:{KEY}")
    A(f"s_mov_b64 exec, {sEn}")
    A(f"v_and_b32 {vI}, 15, v0")
    A(f"v_add_u32 {vI}, {sBase}, {vI}")
    A(f"s_mov_b32 {sT[0]}, {REG}")
    A(f"v_mul_u32_u24 {vChunk}, {sT[0]}, {vChunk}")
    A(f"v_lshl_add_u32 {vK0}, {vI}, 2, {vChunk}")
    A(f"v_mov_b32 {vOne}, 1")
    A("s_waitcnt lgkmcnt(0)")
    A("s_barrier")
    A("s_waitcnt vmcnt(0)")
    ts()
    A(f"s_cmp_lg_u32 {sSlow}, 0")
    A("s_cbranch_scc1 K2_nocg")
    A(f"v_lshl_or_b32 {vCg[0]}, {vKey[0]}, 16, {vCg[0]}")
    A(f"v_lshl_or_b32 {vCg[1]}, {vKey[1]}, 16, {vCg[1]}")
    A("K2_nocg:")
    A(f"s_mov_b64 {sAny1}, 0")
    for r in range(4):
        A(f"s_cmp_eq_u32 {sR}, {r}")
        A(f"s_cselect_b64 {sEn}, -1, 0")
        A(f"s_cmp_eq_u32 {sSlow}, 0")
        A(f"s_cselect_b64 {sEn}, -1, {sEn}")
        A(f"v_add_u32_sdwa {vt[0]}, {vI}, {vE[r]} dst_sel:DWORD dst_unused:UNUSED_PAD src0_sel:DWORD src1_sel:WORD_0")
        A(f"v_mad_u32_u16 {vKa[r]}, {vE[r]}, {s16}, {vK0} op_sel:[1,0,0,0]")
        A(f"v_cmp_lt_u32_sdwa vcc, {vt[0]}, {vE[r]} src0_sel:DWORD src1_sel:WORD_1")
        A(f"v_lshl_add_u32 {vPa[r]}, {vt[0]}, 4, {vChunk}")
        A(f"s_and_b64 {sM0[2*r:2*r+2]}, vcc, {sEn}")
        A(f"v_add_u32 {vt[0]}, 16, {vt[0]}")
        A(f"v_cmp_lt_u32_sdwa vcc, {vt[0]}, {vE[r]} src0_sel:DWORD src1_sel:WORD_1")
        A(f"s_or_b64 exec, {sM0[2*r:2*r+2]}, 1")
        A(f"buffer_load_dword {vKey[r]}, {vKa[r]}, {rW}, {sCo[r]} offen {ldp}")
        A(f"s_and_b64 {sM1[2*r:2*r+2]}, vcc, {sEn}")
        A(f"s_or_b64 {sAny1}, {sAny1}, {sM1[2*r:2*r+2]}")
        A("s_mov_b64 exec, -1")
    A(f"s_cmp_eq_u64 {sAny1}, 0")
    A("s_cbranch_scc1 K2_noh1")
    for r in range(4):
        A(f"s_mov_b64 exec, {sM1[2*r:2*r+2]}")
        A(f"s_cbranch_execz K2_noh1_{r}")
        A(f"buffer_load_dword {vKey[4+r]}, {vKa[r]}, {rW}, {sCo[r]} offen offset:64 {ldp}")
        A(f"buffer_load_dwordx4 {vP[16+4*r:20+4*r]}, {vPa[r]}, {rW}, {sCo[r]} offen offset:256 {ldp}")
        A(f"K2_noh1_{r}:")
    A("K2_noh1:")
    for r in range(4):
        A(f"s_or_b64 exec, {sM0[2*r:2*r+2]}, 1")
        A(f"buffer_load_dwordx4 {vP[4*r:4*r+4]}, {vPa[r]}, {rW}, {sCo[r]} offen {ldp}")
    A(f"s_waitcnt vmcnt({0 if o.get('k2safe') else 4})")
    ts()
    def byte0(dst, sh, src):
        A(f"v_lshlrev_b32_sdwa {dst}, {sh}, {src} dst_sel:DWORD dst_unused:UNUSED_PAD src0_sel:DWORD src1_sel:BYTE_0")
    for r in range(4):
        A(f"s_mov_b64 exec, {sM0[2*r:2*r+2]}")
        byte0(vt[r], 2, vKey[r])
        A(f"ds_add_rtn_u32 {vRk[r]}, {vt[r]}, {vOne} offset:{CNT}")
    A(f"s_cmp_eq_u64 {sAny1}, 0")
    A("s_cbranch_scc1 K2_noh1b")
    for r in range(4):
        A(f"s_mov_b64 exec, {sM1[2*r:2*r+2]}")
        byte0(vt[r], 2, vKey[4+r])
        A(f"ds_add_rtn_u32 {vRk[4+r]}, {vt[r]}, {vOne} offset:{CNT}")
    A.c("a run with 32 or more records: leave the one-round path")
    A(f"s_and_b32 {sT[0]}, {sAny1[0]}, 0x80008000")
    A(f"s_and_b32 {sT[1]}, {sAny1[1]}, 0x80008000")
    A(f"s_mov_b64 exec, {sT}")
    A(f"v_mov_b32 {vt[0]}, 0")
    A(f"ds_write_b32 {vt[0]}, {vOne} offset:{MISC}")
    A("K2_noh1b:")
    A("s_mov_b64 exec, -1")
    A("s_waitcnt lgkmcnt(0)")
    A("s_barrier")
    ts()
    A(f"s_cmp_lg_u32 {sWave}, 15")
    A("s_cbranch_scc1 K2_noscan")
    A.c("wave 15: lane = node. counts -> 8-edge steps per phase -> positions")
    vc = vKa; vw = V.alloc(8, 2)
    assert vc.i % 2 == 0
    A(f"v_lshlrev_b32 {vt[0]}, 4, {vLane}")
    A(f"ds_read_b128 {vc}, {vt[0]} offset:{CNT}")
    A("s_waitcnt lgkmcnt(0)")
    A(f"v_add_u32 {vc[1]}, {vc[0]}, {vc[1]}")
    A(f"v_add_u32 {vc[2]}, {vc[1]}, {vc[2]}")
    A(f"v_add3_u32 {vc[3]}, {vc[2]}, {vc[3]}, 7")
    A(f"v_lshrrev_b32 {vc[3]}, 3, {vc[3]}")
    A(f"v_add_u32 {vt[1]}, 4, {vc[1]}")
    A(f"v_lshrrev_b32 {vt[1]}, 3, {vt[1]}")
    A(f"v_sub_u32 {vc[3]}, {vc[3]}, {vt[1]}")
    A(f"v_lshl_or_b32 {vt[3]}, {vc[3]}, 16, {vt[1]}")
    A(f"v_mov_b32 {vt[2]}, {vt[3]}")
    scan64(A, vt[2])
    A("s_nop 0")
    A(f"v_readlane_b32 {sT[0]}, {vt[2]}, 63")
    A(f"v_sub_u32 {vt[2]}, {vt[2]}, {vt[3]}")
    A(f"s_lshl_b32 {sT[1]}, {sT[0]}, 16")
    A(f"v_add_u32 {vt[2]}, {sT[1]}, {vt[2]}")
    A(f"v_lshlrev_b32 {vt[0]}, 3, {vLane}")
    A(f"ds_write_b64 {vt[0]}, {vt[2:4]} offset:{SEG}")
    A(f"v_and_b32 {vw[0]}, 0xffff, {vt[2]}")
    A(f"v_add_u32 {vt[1]}, {vw[0]}, {vt[1]}")
    A(f"v_lshrrev_b32 {vw[1]}, 16, {vt[2]}")
    A(f"v_sub_u32 {vw[1]}, {vw[1]}, {vt[1]}")
    A(f"v_lshl_or_b32 {vw[1]}, {vw[1]}, 16, {vt[1]}")
    A(f"v_lshlrev_b32 {vw[1]}, 3, {vw[1]}")
    A(f"v_lshlrev_b32 {vw[0]}, 3, {vw[0]}")
    for i in range(1, 4):
        A(f"v_add_u32 {vw[2*i]}, {vw[0]}, {vc[i-1]}")
        A(f"v_mov_b32 {vw[2*i+1]}, {vw[1]}")
    A(f"v_lshlrev_b32 {vt[0]}, 5, {vLane}")
    A(f"ds_write_b128 {vt[0]}, {vw[0:4]} offset:{TBL}")
    A(f"ds_write_b128 {vt[0]}, {vw[4:8]} offset:{TBL+16}")
    A(f"s_lshr_b32 {sT[1]}, {sT[0]}, 16")
    A(f"s_and_b32 {sT[0]}, {sT[0]}, 0xffff")
    A(f"s_add_u32 {sT[0]}, {sT[0]}, {sT[1]}")
    A(f"s_cmp_le_u32 {sT[0]}, {CAP//8}")
    A("s_cbranch_scc1 K2_fits")
    A(f"v_mov_b32 {vt[0]}, 0")
    A(f"ds_write_b32 {vt[0]}, {vOne} offset:{MISC}")
    A("K2_fits:")
    A("s_waitcnt lgkmcnt(0)")
    A("K2_noscan:")
    A("s_barrier")
    ts()
    vT = vw
    A(f"v_mov_b32 {vt[0]}, 0")
    A(f"ds_read_b32 {vt[0]}, {vt[0]} offset:{MISC}")
    A(f"s_mul_i32 {sT[0]}, {sWave}, 24")
    A(f"v_lshl_add_u32 {vt[1]}, {vLane}, 3, {sT[0]}")
    A(f"ds_read_b64 {vt[2:4]}, {vt[1]} offset:{SEG}")
    for r in range(4):
        byte0(vKa[r], 3, vKey[r])
        A(f"ds_read_b64 {vT[2*r:2*r+2]}, {vKa[r]} offset:{TBL}")
    A(f"s_waitcnt lgkmcnt({0 if o.get('k2safe') else 4})")
    A(f"v_readfirstlane_b32 {sT[0]}, {vt[0]}")
    A(f"v_readlane_b32 {sNxt}, {vt[2]}, 0")
    for a in range(3): A(f"v_readlane_b32 {sPk[a]}, {vt[3]}, {a}")
    A(f"s_cmp_gt_u32 {sT[0]}, {sSlow}")
    A("s_cbranch_scc1 K2_toslow")
    def place(r, key, rk, pay, msk, first):
        A(f"s_mov_b64 exec, {msk}")
        A(f"v_add_u32 {rk}, {rk}, {vT[2*r]}")
        A(f"v_cmp_ge_u32_sdwa vcc, {rk}, {vT[2*r+1]} src0_sel:DWORD src1_sel:WORD_0")
        A(f"v_lshrrev_b32 {vt[0]}, 16, {vT[2*r+1]}")
        A(f"s_nop 0")
        A(f"v_cndmask_b32 {vt[0]}, 0, {vt[0]}, vcc")
        A(f"v_add_lshl_u32 {rk}, {rk}, {vt[0]}, 2")
        A(f"ds_write_b32 {rk}, {key} offset:{KEY}")
        A(f"v_lshlrev_b32 {rk}, 2, {rk}")
    for r in range(4):
        A(f"s_waitcnt lgkmcnt({3-r})")
        place(r, vKey[r], vRk[r], None, sM0[2*r:2*r+2], True)
    A(f"s_cmp_eq_u64 {sAny1}, 0")
    A("s_cbranch_scc1 K2_noh1c")
    for r in range(4):
        A(f"s_mov_b64 exec, {sM1[2*r:2*r+2]}")
        A(f"s_cbranch_execz K2_noh1c_{r}")
        byte0(vt[1], 3, vKey[4+r])
        A(f"ds_read_b64 {vT[2*r:2*r+2]}, {vt[1]} offset:{TBL}")
        A("s_waitcnt lgkmcnt(0)")
        place(r, vKey[4+r], vRk[4+r], None, sM1[2*r:2*r+2], False)
        A(f"ds_write_b128 {vRk[4+r]}, {vP[16+4*r:20+4*r]} offset:{PAY}")
        A(f"K2_noh1c_{r}:")
    A("K2_noh1c:")
    for r in range(4):
        A(f"s_mov_b64 exec, {sM0[2*r:2*r+2]}")
        A(f"s_waitcnt vmcnt({3-r})")
        A(f"ds_write_b128 {vRk[r]}, {vP[4*r:4*r+4]} offset:{PAY}")
    A("s_mov_b64 exec, -1")
    hiP = V.n
    vEsave = vE
    V.reset(mV)
    vu = V.alloc(4, 2)
    vRow = V.alloc(); vTr = V.alloc(2); vKc = V.alloc(); vPc = V.alloc(); vEc = V.alloc()
    vKad = V.alloc(); vPad = V.alloc(); vEad = V.alloc()
    vK4 = V.alloc(4, 2); vAd = V.alloc(4); vX = V.alloc(16, 2); vSh = V.alloc(4, 2); vEa = V.alloc(4, 2); vCf = V.alloc(8, 2); vB = V.alloc(4, 2)
    A("s_waitcnt lgkmcnt(0)")
    A.c("lane constants of the main loop")
    A(f"v_and_b32 {vRow}, 31, v0")
    A(f"v_lshrrev_b32 {vu[0]}, 2, {vRow}")
    A(f"v_and_b32 {vu[0]}, 4, {vu[0]}")
    A(f"v_xor_b32 {vRow}, {vRow}, {vu[0]}")
    A(f"v_lshlrev_b32 {vRow}, 4, {vRow}")
    A(f"v_bfe_u32 {vu[0]}, v0, 4, 2")
    A(f"v_bfe_u32 {vu[1]}, v0, 2, 2")
    A(f"v_and_b32 {vu[2]}, 3, v0")
    A(f"v_mul_u32_u24 {vu[3]}, 1056, {vu[0]}")
    A(f"v_lshl_add_u32 {vu[3]}, {vu[1]}, 7, {vu[3]}")
    A(f"v_lshl_add_u32 {vu[3]}, {vu[2]}, 3, {vu[3]}")
    A(f"v_add_u32 {vu[3]}, {sRing[0]}, {vu[3]}")
    A(f"v_lshrrev_b32 {vu[1]}, 1, {vu[1]}")
    A(f"v_lshlrev_b32 {vu[1]}, 6, {vu[1]}")
    A(f"v_add_u32 {vTr[0]}, {vu[3]}, {vu[1]}")
    A(f"v_xor_b32 {vu[1]}, 64, {vu[1]}")
    A(f"v_add_u32 {vTr[1]}, {vu[3]}, {vu[1]}")
    A(f"v_bfe_u32 {vKc}, v0, 5, 1")
    A(f"v_lshlrev_b32 {vKc}, 4, {vKc}")
    A(f"v_lshlrev_b32 {vPc}, 4, {vu[0]}")
    A(f"v_lshl_add_u32 {vEc}, {vu[2]}, 1, {vPc}")
    A(f"s_lshr_b32 {sSt1}, {sNxt}, 16")
    A(f"s_and_b32 {sNxt}, {sNxt}, 0xffff")
    A(f"s_add_u32 {sT[0]}, {sPk[0]}, {sPk[1]}")
    A(f"s_add_u32 {sT[0]}, {sT[0]}, {sPk[2]}")
    A(f"s_lshr_b32 {sT[1]}, {sT[0]}, 16")
    A(f"s_and_b32 {sT[0]}, {sT[0]}, 0xffff")
    A(f"s_add_u32 {sEnd0}, {sNxt}, {sT[0]}")
    A(f"s_add_u32 {sRem}, {sT[0]}, {sT[1]}")
    A(f"s_cmp_eq_u32 {sNxt}, {sEnd0}")
    A(f"s_cselect_b32 {sNxt}, {sSt1}, {sNxt}")
    A("s_barrier")
    ts()
    A(f"s_cmp_eq_u32 {sRem}, 0")
    A("s_cbranch_scc1 K2_done")
    def rd_keys():
        A(f"s_lshl_b32 {sKo}, {sNxt}, 5")
        A(f"v_add_u32 {vKad}, {sKo}, {vKc}")
        A(f"ds_read_b128 {vK4}, {vKad} offset:{KEY}")
    def rd_pay():
        A(f"s_lshl_b32 {sPo}, {sNxt}, 7")
        A(f"v_add_u32 {vPad}, {sPo}, {vPc}")
        A(f"v_add_u32 {vEad}, {sPo}, {vEc}")
        A(f"ds_read_b64 {vSh[0:2]}, {vPad} offset:{PAY}")
        A(f"ds_read_b64 {vSh[2:4]}, {vPad} offset:{PAY+64}")
        A(f"ds_read_u16_d16_hi {vEa[0]}, {vEad} offset:{PAY+8}")
        A(f"ds_read_u16_d16_hi {vEa[2]}, {vEad} offset:{PAY+72}")
    def adv():
        A(f"s_add_u32 {sNxt}, {sNxt}, 1")
        A(f"s_cmp_eq_u32 {sNxt}, {sEnd0}")
        A(f"s_cselect_b32 {sNxt}, {sSt1}, {sNxt}")
    def addrs():
        for k in range(4):
            A(f"v_mad_u32_u16 {vAd[k]}, {vK4[k]}, {s512}, {vRow} op_sel:[1,0,0,0]")
    def dma():
        for k in range(4):
            A(f"s_mov_b32 m0, {sRing[k]}")
            A("s_nop 0")
            A(f"buffer_load_dwordx4 {vAd[k]}, {rX}, 0 offen lds")
    def coef():
        A(f"v_mfma_f32_4x4x4_16b_bf16 {vCf[0:4]}, {vCg}, {vSh[0:2]}, 0")
        A(f"v_mfma_f32_4x4x4_16b_bf16 {vCf[4:8]}, {vCg}, {vSh[2:4]}, 0")
        addrs()
        A("s_nop 7" if o.get('msafe') else "s_nop 0")
        for i in range(4):
            A(f"v_pk_mul_f32 {vCf[2*i:2*i+2]}, {vCf[2*i:2*i+2]}, {vEa[i&2:(i&2)+2]} op_sel_hi:[1,0]")
        for i in range(4): A(f"v_cvt_pk_bf16_f32 {vB[i]}, {vCf[2*i]}, {vCf[2*i+1]}")
    rd_keys()
    rd_pay()
    A(f"s_waitcnt lgkmcnt({0 if o.get('msafe') else 4})")
    addrs()
    dma()
    adv()
    rd_keys()
    A("s_waitcnt lgkmcnt(0)")
    coef()
    A(f"s_mov_b32 {sPh}, 0")
    A("K2_phase:")
    for a in range(3):
        A(f"s_and_b32 {sCnt}, {sPk[a]}, 0xffff")
        A(f"s_cbranch_scc0 K2_seg{a}_end")
        A(f"K2_seg{a}:")
        A("s_waitcnt vmcnt(0)")
        if o.get('dsafe'): A("s_nop 15\ns_nop 15")
        for t in range(4):
            for h in range(2):
                A(f"ds_read_b64_tr_b16 {vX[4*t+2*h:4*t+2*h+2]}, {vTr[t>>1]} offset:{h*512 + (t&1)*32}")
        A(f"s_sub_u32 {sRem}, {sRem}, 1")
        A(f"s_cmp_eq_u32 {sRem}, 0")
        A("s_waitcnt lgkmcnt(0)")
        A(f"s_cbranch_scc1 K2_seg{a}_last")
        dma()
        rd_pay()
        adv()
        rd_keys()
        for t in range(4):
            A(f"v_mfma_f32_16x16x32_bf16 {vAcc[16*a+4*t:16*a+4*t+4]}, {vX[4*t:4*t+4]}, {vB}, {vAcc[16*a+4*t:16*a+4*t+4]}")
        A("s_waitcnt lgkmcnt(0)")
        coef()
        A(f"s_sub_u32 {sCnt}, {sCnt}, 1")
        A(f"s_cmp_lg_u32 {sCnt}, 0")
        A(f"s_cbranch_scc1 K2_seg{a}")
        A(f"K2_seg{a}_end:")
        A(f"s_lshr_b32 {sPk[a]}, {sPk[a]}, 16")
    A(f"s_add_u32 {sPh}, {sPh}, 1")
    A(f"s_cmp_lt_u32 {sPh}, 2")
    A("s_cbranch_scc1 K2_phase")
    A("s_branch K2_done")
    for a in range(3):
        A(f"K2_seg{a}_last:")
        for t in range(4):
            A(f"v_mfma_f32_16x16x32_bf16 {vAcc[16*a+4*t:16*a+4*t+4]}, {vX[4*t:4*t+4]}, {vB}, {vAcc[16*a+4*t:16*a+4*t+4]}")
        if a < 2: A("s_branch K2_done")
    A("K2_done:")
    if o.get('esafe'): A("s_nop 15\ns_nop 15\ns_nop 15")
    ts()
    A(f"s_cmp_lg_u32 {sSlow}, 0")
    A("s_cbranch_scc1 K2_nextround")
    A("K2_epi:")
    A(f"s_cmp_ge_u32 {sWave}, 14")
    A("s_cbranch_scc1 K2_fin")
    V.reset(mV)
    vu = V.alloc(2, 2); vW = V.alloc(32, 2); vWf = V.alloc(16, 2); vA = V.alloc(8, 2); vo = V.alloc(2, 2)
    A(f"v_lshlrev_b32 {vu[0]}, 4, {vLane}")
    for i in range(4):
        A(f"ds_read_b128 {vWf[4*i:4*i+4]}, {vu[0]} offset:{WRF + 1024*i}")
    for i in range(8):
        A(f"ds_read_b128 {vW[4*i:4*i+4]}, {vu[0]} offset:{WOP + 1024*i}")
    A(f"v_lshlrev_b32 {vu[1]}, 3, {vLane}")
    A(f"s_mul_i32 {sT[0]}, {sWave}, 3")
    A(f"s_add_u32 {sT[0]}, {sT[0]}, {sN0}")
    A("s_waitcnt lgkmcnt(0)")
    for a in range(3):
        A(f"s_cmp_ge_u32 {sT[0]}, {sN1}")
        A("s_cbranch_scc1 K2_fin")
        acc = vAcc[16*a:16*a+16]
        for i in range(8):
            A(f"v_pk_mul_f32 {acc[2*i:2*i+2]}, {acc[2*i:2*i+2]}, {vWf[2*i:2*i+2]}")
        for i in range(8):
            A(f"v_cvt_pk_bf16_f32 {vA[i]}, {acc[2*i]}, {acc[2*i+1]}")
        A(f"s_lshl_b32 {sT[1]}, {sT[0]}, 9")
        A(f"s_add_u32 {sT[0]}, {sT[0]}, 1")
        for tau in range(4):
            A(f"v_mfma_f32_16x16x32_bf16 {acc[4*tau:4*tau+4]}, {vA[0:4]}, {vW[4*tau:4*tau+4]}, 0")
        for tau in range(4):
            A(f"v_mfma_f32_16x16x32_bf16 {acc[4*tau:4*tau+4]}, {vA[4:8]}, {vW[16+4*tau:20+4*tau]}, {acc[4*tau:4*tau+4]}")
        A("s_nop 15" if o.get('esafe') else "s_nop 4")
        for tau in range(4):
            A(f"v_pk_add_f32 {acc[4*tau:4*tau+2]}, {acc[4*tau:4*tau+2]}, {acc[4*tau+2:4*tau+4]}")
            A(f"v_add_f32 {acc[4*tau]}, {acc[4*tau]}, {acc[4*tau+1]}")
        A(f"v_cvt_pk_bf16_f32 {vo[0]}, {acc[0]}, {acc[4]}")
        A(f"v_cvt_pk_bf16_f32 {vo[1]}, {acc[8]}, {acc[12]}")
        A(f"buffer_store_dwordx2 {vo}, {vu[1]}, {rO}, {sT[1]} offen")
    A("K2_fin:")
    if o.get('ts'):
        ts()
        A("s_waitcnt vmcnt(0)")
        ts()
        ts.flush(vu[0], sWave, rW)
    A("K2_end:")
    A("s_endpgm")
    A("K2_toslow:")
    A.c("some run is long or the bin is too full: redo in rounds of (64 runs x 32 records)")
    A("s_waitcnt vmcnt(0) lgkmcnt(0)")
    for r in range(4):
        A(f"v_lshrrev_b32 {vt[1]}, 16, {vE[r]}")
        A(f"v_and_b32 {vt[2]}, 0xffff, {vE[r]}")
        A(f"v_sub_u32 {vt[1]}, {vt[1]}, {vt[2]}")
        if r == 0: A(f"v_mov_b32 {vt[0]}, {vt[1]}")
        else: A(f"v_max_u32 {vt[0]}, {vt[0]}, {vt[1]}")
    A(f"v_mov_b32 {vt[1]}, 0")
    A(f"ds_max_u32 {vt[1]}, {vt[0]} offset:{MISC+4}")
    A("s_waitcnt lgkmcnt(0)")
    A("s_barrier")
    A(f"ds_read_b32 {vt[0]}, {vt[1]} offset:{MISC+4}")
    A("s_waitcnt lgkmcnt(0)")
    A(f"v_readfirstlane_b32 {sMaxN}, {vt[0]}")
    A(f"s_mov_b32 {sSlow}, 1")
    A("s_barrier")
    A("s_branch K2_round")
    A("K2_nextround:")
    A(f"s_add_u32 {sBase}, {sBase}, 32")
    A(f"s_cmp_lt_u32 {sBase}, {sMaxN}")
    A("s_cbranch_scc1 K2_again")
    A(f"s_mov_b32 {sBase}, 0")
    A(f"s_add_u32 {sR}, {sR}, 1")
    A(f"s_cmp_ge_u32 {sR}, 4")
    A("s_cbranch_scc1 K2_epi")
    A("K2_again:")
    A("s_waitcnt vmcnt(0) lgkmcnt(0)")
    A("s_barrier")
    A("s_branch K2_round")
    return A.text() + kd(name, V.hi, S.hi), LDS

HEAD = open("gather_scatter__tensor_product_equiv_mace__graph.s.ref").read().split("; Override launch")[0]

def build(o):
    k1, l1 = gen_k1(o); k2, l2 = gen_k2(o)
    t = HEAD
    t += f"; @launch kernel=part_kernel grid=(256,1,1) block=(640,1,1) lds={l1}\n"
    t += f"; @launch kernel=gather_scatter__tensor_product_equiv_mace__graph_kernel grid=(256,1,1) block=(1024,1,1) lds={l2}\n"
    t += '.amdgcn_target "amdgcn-amd-amdhsa--gfx950"\n.text\n' + k1 + k2
    return t

if __name__ == "__main__":
    o = dict(pf=0.6)
    for a in sys.argv[2:]:
        k, v = a.split("=")
        try: v = eval(v)
        except Exception: pass
        o[k] = v
    open(sys.argv[1], "w").write(build(o))
```

```python
import sys
from asmlib import *

N = 10000; E = 640000; CH = 2500
REG = 53248
TAB = 256 * REG
WSB = TAB + 256 * 1024
MAGIC = 429497
TSB = 0x1000000

class Stamps:
    def __init__(self, A, S, on, which, n=9):
        self.A = A; self.on = on; self.k = 0; self.which = which; self.n = n
        if on: self.r = S.alloc(2 * n, 2)
    def __call__(self):
        if self.on:
            self.A(f"s_memrealtime {self.r[2*self.k:2*self.k+2]}")
            self.k += 1
    def init(self, ws):
        self.ws = ws
        if self.on:
            for i in range(2, 2 * self.n, 2): self.A(f"s_mov_b32 {self.r[i]}, 0")
    def flush(self, vt, swave, d):
        if not self.on: return
        A = self.A
        if self.on == 3:
            A("s_waitcnt lgkmcnt(0)")
            A(f"s_or_b32 s3, s2, {swave}")
            A(f"s_cbranch_scc1 TS_skip{self.which}")
            if self.which == 0:
                srd(A, d, self.ws, 0x10000000)
                A("s_mov_b64 exec, 1")
                A(f"s_mov_b32 s3, {TSB}")
                for i in range(8):
                    A(f"v_mov_b32 {vt}, {self.r[2*i]}")
                    A(f"buffer_store_dword {vt}, off, {d}, s3 offset:{4*i}")
                    A("s_nop 1")
            else:
                (ka, ia), (kb, ib) = self.iv
                A(f"s_add_u32 {self.ws[0]}, {self.ws[0]}, {TSB}")
                A(f"s_addc_u32 {self.ws[1]}, {self.ws[1]}, 0")
                A(f"s_load_dword {d[0]}, {self.ws}, {4*ia}")
                A(f"s_load_dword {d[1]}, {self.ws}, {4*ib}")
                A("s_waitcnt lgkmcnt(0)")
                if ka == 1: A(f"s_mov_b32 {d[0]}, {self.r[2*ia]}")
                if kb == 1: A(f"s_mov_b32 {d[1]}, {self.r[2*ib]}")
                A(f"s_sub_u32 {d[0]}, {d[1]}, {d[0]}")
                A(f"s_min_u32 {d[0]}, {d[0]}, 10000")
                if self.fix is not None: A(f"s_mov_b32 {d[0]}, {self.fix}")
                A(f"s_mul_i32 {d[0]}, {d[0]}, 10")
                A("TS_spin:")
                A(f"s_memrealtime {d[2:4]}")
                A("s_waitcnt lgkmcnt(0)")
                A(f"s_sub_u32 {d[2]}, {d[2]}, {self.r[16]}")
                A(f"s_cmp_lt_u32 {d[2]}, {d[0]}")
                A("s_cbranch_scc1 TS_spin")
            A(f"TS_skip{self.which}:")
            return
        if self.on == 2:
            A(f"s_load_dwordx2 {self.ws}, s[0:1], 72")
            A("s_waitcnt lgkmcnt(0)")
            srd(A, d, self.ws, 256)
            A("s_mov_b64 exec, 1")
            sel = [0, 1, 2, 3, 4, 5, 6, 7] if self.which == 0 else [0, 1, 2, 4, 5, 6, 7, 8]
            for j, i in enumerate(sel):
                A(f"v_mov_b32 {vt}, {self.r[2*i]}")
                A(f"buffer_atomic_umax {vt}, off, {d}, 0 offset:{4*j}")
                A("s_nop 1")
                A(f"v_not_b32 {vt}, {self.r[2*i]}")
                A(f"buffer_atomic_umax {vt}, off, {d}, 0 offset:{32+4*j}")
                A("s_nop 1")
            return
        A("s_waitcnt lgkmcnt(0)")
        srd(A, d, self.ws, 0x10000000)
        A("s_mov_b64 exec, 1")
        A(f"s_lshl_b32 s3, s2, 4")
        A(f"s_add_u32 s3, s3, {swave}")
        A(f"s_lshl_b32 s3, s3, 6")
        A(f"s_add_u32 s3, s3, {TSB + self.which * 0x100000}")
        for i in range(12):
            A(f"v_mov_b32 {vt}, {self.r[2*i] if i < self.n else 0}")
            A(f"buffer_store_dword {vt}, off, {d}, s3 offset:{4*i}")
            A("s_nop 1")

def gen_k1(o):
    name = "part_kernel"
    A = Asm(); V = Regs("v", 1, 128); S = Regs("s", 4, 100)
    STAGE = 0; CNT = REG; ENT = CNT + 1024; UW = ENT + 1024; LDS = UW + 16
    ldp = o.get('k1_ld', 'nt'); stp = o.get('k1_st', '')
    A(f".globl {name}\n.p2align 8\n.type {name},@function\n{name}:")
    sP = S.alloc(16, 4); sWS = S.alloc(2, 2)
    sX, sSrc, sDst, sSh, sEa = sP[0:2], sP[2:4], sP[4:6], sP[6:8], sP[8:10]
    rOut = S.alloc(4, 4); rTab = S.alloc(4, 4); rX = S.alloc(4, 4)
    sAct = S.alloc(2, 2); sM = S.alloc(); s625 = S.alloc(); sT = S.alloc(); sWave = S.alloc(); s16 = S.alloc()
    ts = Stamps(A, S, o.get('ts'), 0)
    A("s_cmp_ge_u32 s2, 256")
    A("s_cbranch_scc1 K1_end")
    ts()
    A(f"s_load_dwordx16 {sP}, s[0:1], 0")
    A(f"s_load_dwordx2 {sWS}, s[0:1], 80")
    vo4 = V.alloc(2); vo8 = V.alloc(2); vt = V.alloc(4, 2); vOne = V.alloc()
    vD = V.alloc(4, 2); vS = V.alloc(4, 2); vSh = V.alloc(8, 2); vEa = V.alloc(8, 2)
    vC = V.alloc(4); vRk = V.alloc(4); vKey = V.alloc(4); vEnt = V.alloc(4); vPf = V.alloc(2)
    A.c("zero the bin counters")
    A(f"v_lshlrev_b32 {vt[0]}, 2, v0")
    A(f"v_mov_b32 {vt[1]}, 0")
    A(f"v_cmp_gt_u32 vcc, 256, v0")
    A(f"s_and_saveexec_b64 {sAct}, vcc")
    A(f"ds_write_b32 {vt[0]}, {vt[1]} offset:{CNT}")
    A(f"s_mov_b64 exec, {sAct}")
    A(f"v_lshrrev_b32 {vt[2]}, 6, v0")
    A(f"s_mul_i32 {sT}, s2, {CH*4}")
    A(f"v_readfirstlane_b32 {sWave}, {vt[2]}")
    A(f"v_lshl_add_u32 {vo4[0]}, v0, 3, {sT}")
    A(f"v_add_u32 {vo4[1]}, {CH*2}, {vo4[0]}")
    A(f"v_lshlrev_b32 {vo8[0]}, 1, {vo4[0]}")
    A(f"v_lshlrev_b32 {vo8[1]}, 1, {vo4[1]}")
    A(f"v_mov_b32 {vOne}, 4")
    A(f"s_mov_b32 {sM}, {MAGIC}")
    A(f"s_movk_i32 {s625}, 625")
    A(f"s_movk_i32 {s16}, 16")
    A(f"v_cmp_gt_u32 vcc, {CH//4}, v0")
    A(f"s_waitcnt lgkmcnt(0)")
    A(f"s_mov_b64 {sAct}, vcc")
    A(f"s_mov_b64 exec, vcc")
    A(f"global_load_dwordx2 {vD[0:2]}, {vo4[0]}, {sDst} {ldp}")
    A(f"global_load_dwordx2 {vD[2:4]}, {vo4[1]}, {sDst} {ldp}")
    A(f"global_load_dwordx2 {vS[0:2]}, {vo4[0]}, {sSrc} {ldp}")
    A(f"global_load_dwordx2 {vS[2:4]}, {vo4[1]}, {sSrc} {ldp}")
    A(f"global_load_dwordx4 {vSh[0:4]}, {vo8[0]}, {sSh} {ldp}")
    A(f"global_load_dwordx4 {vEa[0:4]}, {vo8[0]}, {sEa} {ldp}")
    A(f"global_load_dwordx4 {vSh[4:8]}, {vo8[1]}, {sSh} {ldp}")
    A(f"global_load_dwordx4 {vEa[4:8]}, {vo8[1]}, {sEa} {ldp}")
    A("s_mov_b64 exec, -1")
    ts.init(sWS)
    A(f"s_mul_i32 {sT}, s2, {REG}")
    A(f"s_add_u32 {rOut[0]}, {sWS[0]}, {sT}")
    A(f"s_addc_u32 {rOut[1]}, {sWS[1]}, 0")
    A(f"s_and_b32 {rOut[1]}, {rOut[1]}, 0xffff")
    A(f"s_mov_b32 {rOut[2]}, 0")
    A(f"s_mov_b32 {rOut[3]}, 0x20000")
    srd(A, rTab, sWS, WSB)
    npf = 0
    pf = o.get('pf', 0.0)
    if pf > 0:
        A.c("touch the leading part of x so that it is in this die's L2 when the gather starts (speed only)")
        lines = int(pf * 40000) // 32
        srd(A, rX, sX, N * 512)
        A(f"s_lshr_b32 {sT}, s2, 3")
        A(f"s_mul_i32 {sT}, {sT}, {lines*128}")
        A(f"v_lshlrev_b32 {vt[0]}, 7, v0")
        for k in range((lines + 639) // 640):
            rem = lines - 640 * k
            if rem < 640:
                A(f"v_cmp_gt_u32 vcc, {rem}, v0")
                A(f"s_or_b64 exec, vcc, 1")
            A(f"buffer_load_dword {vPf[0]}, {vt[0]}, {rX}, {sT} offen")
            A(f"s_add_u32 {sT}, {sT}, {640*128}")
            npf += 1
        A("s_mov_b64 exec, -1")
        rest = 40000 - lines * 32
        if rest > 0 and o.get('pfrest', 1):
            per = (rest + 255) // 256
            A(f"s_mul_i32 {sT}, s2, {per*128}")
            A(f"s_add_u32 {sT}, {sT}, {lines*32*128}")
            A(f"v_cmp_gt_u32 vcc, {per}, v0")
            A(f"s_or_b64 exec, vcc, 1")
            A(f"buffer_load_dword {vPf[1]}, {vt[0]}, {rX}, {sT} offen nt")
            A("s_mov_b64 exec, -1")
            npf += 1
    A("s_barrier")
    A(f"s_mov_b64 exec, {sAct}")
    A(f"s_waitcnt vmcnt({0 if o.get('k1safe') else 6 + npf})")
    ts()
    for e in range(4):
        A(f"v_mul_u32_u24 {vt[0]}, {sM}, {vD[e]}")
        A(f"v_lshlrev_b32_sdwa {vC[e]}, 2, {vt[0]} dst_sel:DWORD dst_unused:UNUSED_PAD src0_sel:DWORD src1_sel:BYTE_3")
        A(f"ds_add_rtn_u32 {vRk[e]}, {vC[e]}, {vOne} offset:{CNT}")
    for e in range(4):
        A(f"v_mad_u32_u24 {vt[0]}, {vC[e]}, {s625}, 60")
        A(f"v_lshrrev_b32 {vt[0]}, 6, {vt[0]}")
        A(f"v_sub_u32 {vD[e]}, {vD[e]}, {vt[0]}")
    A(f"s_waitcnt lgkmcnt(0)")
    A("s_barrier")
    ts()
    A("s_mov_b64 exec, -1")
    A(f"s_cmp_lg_u32 {sWave}, 9")
    A("s_cbranch_scc1 K1_noscan")
    A.c("wave 9: run sizes (payload units + key units), exclusive scan, entries {first unit, first key unit}")
    m = V.mark()
    vc = V.alloc(4, 2); vz = V.alloc(4); vi = V.alloc(); vl = V.alloc(); ve = V.alloc(4, 2); vg = V.alloc(4, 2)
    A(f"v_and_b32 {vl}, 63, v0")
    A(f"v_lshlrev_b32 {vl}, 4, {vl}")
    A(f"ds_read_b128 {vc}, {vl} offset:{CNT}")
    A(f"s_lshl_b32 {sT}, s2, 10")
    A(f"s_add_u32 {sT}, {sT}, {TAB}")
    A("s_waitcnt lgkmcnt(0)")
    for i in range(4):
        A(f"v_add_u32 {vz[i]}, 12, {vc[i]}")
        A(f"v_lshrrev_b32 {vc[i]}, 2, {vc[i]}")
        A(f"v_lshrrev_b32 {vz[i]}, 4, {vz[i]}")
    A(f"v_add_u32 {vz[0]}, {vz[0]}, {vc[0]}")
    for i in range(1, 4):
        A(f"v_add3_u32 {vz[i]}, {vz[i]}, {vc[i]}, {vz[i-1]}")
    A(f"v_mov_b32 {vi}, {vz[3]}")
    scan64(A, vi)
    A(f"v_sub_u32 {ve[0]}, {vi}, {vz[3]}")
    for i in range(1, 4):
        A(f"v_add_u32 {ve[i]}, {ve[0]}, {vz[i-1]}")
    for i in range(4):
        A(f"v_add_u32 {vc[i]}, {vc[i]}, {ve[i]}")
        A(f"v_lshl_or_b32 {vg[i]}, {vc[i]}, 16, {ve[i]}")
    A(f"ds_write_b128 {vl}, {vg} offset:{ENT}")
    A(f"buffer_store_dwordx4 {vg}, {vl}, {rTab}, {sT} offen {stp}")
    A(f"s_mov_b64 exec, 0x8000000000000000" if False else f"s_mov_b32 exec_lo, 0\ns_mov_b32 exec_hi, 0x80000000")
    A(f"v_mov_b32 {vl}, 0")
    A(f"ds_write_b32 {vl}, {vi} offset:{UW}")
    A("s_mov_b64 exec, -1")
    A("s_waitcnt lgkmcnt(0)")
    V.reset(m)
    A("K1_noscan:")
    A(f"s_mov_b64 exec, {sAct}")
    A(f"s_waitcnt vmcnt({4 + npf})")
    for e in range(4):
        A(f"v_mul_u32_u24 {vt[0]}, {sM}, {vS[e]}")
        A(f"v_alignbit_b32 {vt[0]}, {vD[e]}, {vt[0]}, 30")
        A(f"v_lshl_or_b32 {vKey[e]}, {vS[e]}, 16, {vt[0]}")
    A("s_barrier")
    ts()
    for e in range(4):
        A(f"ds_read_b32 {vEnt[e]}, {vC[e]} offset:{ENT}")
    A(f"v_mov_b32 {vt[3]}, 0")
    A(f"ds_read_b32 {vt[3]}, {vt[3]} offset:{UW}")
    for e in range(4):
        A(f"s_waitcnt lgkmcnt({0 if o.get('k1safe') else 4})")
        A(f"v_mad_u32_u16 {vt[0]}, {vEnt[e]}, {s16}, {vRk[e]} op_sel:[1,0,0,0]")
        A(f"ds_write_b32 {vt[0]}, {vKey[e]} offset:{STAGE}")
        A(f"v_lshlrev_b32 {vRk[e]}, 2, {vRk[e]}")
        A(f"v_mad_u32_u16 {vC[e]}, {vEnt[e]}, {s16}, {vRk[e]}")
    A(f"s_waitcnt vmcnt({2 + npf})")
    for e in range(2):
        A(f"ds_write2_b64 {vC[e]}, {vSh[2*e:2*e+2]}, {vEa[2*e:2*e+2]} offset0:0 offset1:1")
    A(f"s_waitcnt vmcnt({npf})")
    ts()
    for e in range(2, 4):
        A(f"ds_write2_b64 {vC[e]}, {vSh[2*e:2*e+2]}, {vEa[2*e:2*e+2]} offset0:0 offset1:1")
    A("s_waitcnt lgkmcnt(0)")
    A(f"v_readfirstlane_b32 {sT}, {vt[3]}")
    A("s_mov_b64 exec, -1")
    A(f"v_lshlrev_b32 {vt[0]}, 4, v0")
    A(f"s_lshl_b32 {rOut[2]}, {sT}, 4")
    A("s_barrier")
    ts()
    vO = V.alloc(24, 2)
    for k in range(5):
        A(f"ds_read_b128 {vO[4*k:4*k+4]}, {vt[0]} offset:{STAGE + k*10240}")
    A(f"s_cmp_gt_u32 {sWave}, 1")
    A("s_cbranch_scc1 K1_no6")
    A(f"ds_read_b128 {vO[20:24]}, {vt[0]} offset:{STAGE + 5*10240}")
    A(f"s_mov_b32 {sT}, {5*10240}")
    A("s_waitcnt lgkmcnt(0)")
    A(f"buffer_store_dwordx4 {vO[20:24]}, {vt[0]}, {rOut}, {sT} offen {stp}")
    A("K1_no6:")
    for k in range(5):
        A(f"s_mov_b32 {sT}, {k*10240}")
        A(f"s_waitcnt lgkmcnt({0 if o.get('k1safe') else 4-k})")
        A(f"buffer_store_dwordx4 {vO[4*k:4*k+4]}, {vt[0]}, {rOut}, {sT} offen {stp}")
    if o.get('ts'):
        ts()
        A("s_waitcnt vmcnt(0)")
        ts()
        ts.flush(vt[1], sWave, rTab)
    A("K1_end:")
    A("s_endpgm")
    return A.text() + kd(name, V.hi, S.hi), LDS

def gen_k2(o):
    name = "gather_scatter__tensor_product_equiv_mace__graph_kernel"
    A = Asm(); V = Regs("v", 1, 128); S = Regs("s", 4, 102)
    CAP = 3072
    CNT = 0; TBL = 1024; SEG = 3072; MISC = 3584; WOP = 4096; WRF = WOP + 8192; KEY = WRF + 4096
    PAY = KEY + CAP * 4 + 128; RING = PAY + CAP * 16 + 128; LDS = RING + 14 * 4224
    assert RING % 64 == 0 and PAY < 65536 - 256 and LDS <= 163840
    ldp = o.get('k2_ld', 'nt')
    A(f".globl {name}\n.p2align 8\n.type {name},@function\n{name}:")
    sXp = S.alloc(2, 2); sQ = S.alloc(8, 4); sWS = S.alloc(2, 2)
    sCg, sWr, sWo, sOut = sQ[0:2], sQ[2:4], sQ[4:6], sQ[6:8]
    rX = S.alloc(4, 4); rW = S.alloc(4, 4); rO = S.alloc(4, 4)
    sWave = S.alloc(); sBin = S.alloc(); sN0 = S.alloc(); sN1 = S.alloc(); sT = S.alloc(2, 2)
    sSlow = S.alloc(); sR = S.alloc(); sBase = S.alloc(); sMaxN = S.alloc()
    sCo = S.alloc(4); s16 = S.alloc(); s512 = S.alloc()
    sM0 = S.alloc(8, 2); sM1 = S.alloc(8, 2); sEn = S.alloc(2, 2); sAny1 = S.alloc(2, 2)
    sPk = S.alloc(3); sNxt = S.alloc(); sEnd0 = S.alloc(); sSt1 = S.alloc(); sRem = S.alloc(); sCnt = S.alloc(); sPh = S.alloc()
    sRing = S.alloc(4); sKo = S.alloc(); sPo = S.alloc()
    ts = Stamps(A, S, o.get('ts'), 1); ts.iv = o.get('iv'); ts.fix = o.get('fix')
    A("s_cmp_ge_u32 s2, 256")
    A("s_cbranch_scc1 K2_end")
    ts()
    A(f"s_load_dwordx2 {sWS}, s[0:1], 80")
    A(f"s_load_dwordx2 {sXp}, s[0:1], 0")
    A(f"s_load_dwordx8 {sQ}, s[0:1], 40")
    vLane = V.alloc(); vCg = V.alloc(2, 2); vAcc = V.alloc(48, 4)
    mV = V.mark()
    vt = V.alloc(4, 2); vI = V.alloc(); vChunk = V.alloc(); vK0 = V.alloc(); vOne = V.alloc()
    vE = V.alloc(4); vKa = V.alloc(4, 2); vRk = V.alloc(8); vPa = vRk[0:4]
    vKey = V.alloc(8); vP = V.alloc(32, 2)
    A(f"v_lshrrev_b32 {vt[0]}, 6, v0")
    A(f"v_and_b32 {vLane}, 63, v0")
    A(f"v_readfirstlane_b32 {sWave}, {vt[0]}")
    A(f"s_and_b32 {sBin}, s2, 7")
    A(f"s_lshl_b32 {sBin}, {sBin}, 5")
    A(f"s_lshr_b32 {sT[0]}, s2, 3")
    A(f"s_add_u32 {sBin}, {sBin}, {sT[0]}")
    A(f"s_mul_i32 {sN0}, {sBin}, 625")
    A(f"s_add_u32 {sN1}, {sN0}, {625+15}")
    A(f"s_add_u32 {sN0}, {sN0}, 15")
    A(f"s_lshr_b32 {sN0}, {sN0}, 4")
    A(f"s_lshr_b32 {sN1}, {sN1}, 4")
    A(f"s_mov_b32 {sSlow}, 0")
    A(f"s_mov_b32 {sR}, 0")
    A(f"s_mov_b32 {sBase}, 0")
    A(f"s_mov_b32 {sMaxN}, 0")
    A(f"s_movk_i32 {s16}, 16")
    A(f"s_movk_i32 {s512}, 512")
    for r in range(4): A(f"s_mov_b32 {sCo[r]}, {r*64*REG}")
    A(f"s_mul_i32 {sRing[0]}, {sWave}, 4224")
    A(f"s_add_u32 {sRing[0]}, {sRing[0]}, {RING}")
    for k in range(1, 4): A(f"s_add_u32 {sRing[k]}, {sRing[0]}, {1056*k}")
    for i in range(0, 48, 2): A(f"v_mov_b64 {vAcc[i:i+2]}, 0")
    A("s_waitcnt lgkmcnt(0)")
    srd(A, rW, sWS, WSB); srd(A, rX, sXp, N * 512); srd(A, rO, sOut, N * 512)
    ts.init(sWS)
    A("K2_round:")
    A.c("run table entries of this bin: lane group q = tid>>4 reads chunks q+64r")
    A(f"v_lshrrev_b32 {vChunk}, 4, v0")
    A(f"s_lshl_b32 {sT[0]}, {sBin}, 2")
    A(f"s_add_u32 {sT[0]}, {sT[0]}, {TAB}")
    A(f"v_lshl_add_u32 {vt[0]}, {vChunk}, 10, {sT[0]}")
    for r in range(4):
        A(f"s_mov_b32 {sT[1]}, {r*65536}")
        A(f"buffer_load_dword {vE[r]}, {vt[0]}, {rW}, {sT[1]} offen")
    A.c("constants (first round only)")
    A(f"s_cmp_lg_u32 {sSlow}, 0")
    A("s_cbranch_scc1 K2_noconst")
    A(f"v_and_b32 {vt[0]}, 3, v0")
    A(f"v_bfe_u32 {vt[1]}, v0, 2, 2")
    A(f"v_lshlrev_b32 {vt[2]}, 5, {vt[0]}")
    A(f"v_lshl_add_u32 {vt[2]}, {vt[1]}, 1, {vt[2]}")
    A(f"global_load_ushort {vCg[0]}, {vt[2]}, {sCg}")
    A(f"global_load_ushort {vKey[0]}, {vt[2]}, {sCg} offset:8")
    A(f"global_load_ushort {vCg[1]}, {vt[2]}, {sCg} offset:16")
    A(f"global_load_ushort {vKey[1]}, {vt[2]}, {sCg} offset:24")
    A(f"v_bfe_u32 {vt[1]}, v0, 4, 2")
    A(f"s_cmp_lt_u32 {sWave}, 13")
    A("s_cbranch_scc1 K2_now")
    A(f"s_cmp_gt_u32 {sWave}, 13")
    A("s_cbranch_scc1 K2_wout")
    A.c("wave 13: w_r as f32 in LDS, lane (g,w,k): wr[k][16t+4g+r]")
    A(f"v_lshlrev_b32 {vt[2]}, 7, {vt[0]}")
    A(f"v_lshl_add_u32 {vt[2]}, {vt[1]}, 3, {vt[2]}")
    for t in range(4):
        A(f"global_load_dwordx2 {vP[2*t:2*t+2]}, {vt[2]}, {sWr} offset:{32*t}")
    A(f"v_lshlrev_b32 {vt[0]}, 4, {vLane}")
    A("s_waitcnt vmcnt(0)")
    for t in range(4):
        for i in range(2):
            A(f"v_lshlrev_b32 {vP[16+4*t+2*i]}, 16, {vP[2*t+i]}")
            A(f"v_and_b32 {vP[16+4*t+2*i+1]}, 0xffff0000, {vP[2*t+i]}")
        A(f"ds_write_b128 {vt[0]}, {vP[16+4*t:20+4*t]} offset:{WRF + 1024*t}")
    A("s_branch K2_now")
    A("K2_wout:")
    A.c("waves 14,15: w_out as MFMA B operands in LDS. K-step s = wave-14; lane (g,n): W[32s+16(j>>2)+4g+(j&3)][4n+tau]")
    A(f"s_sub_u32 {sT[0]}, {sWave}, 14")
    A(f"s_lshl_b32 {sT[1]}, {sT[0]}, 12")
    A(f"v_and_b32 {vt[0]}, 15, v0")
    A(f"v_lshlrev_b32 {vt[0]}, 3, {vt[0]}")
    A(f"v_lshl_add_u32 {vt[0]}, {vt[1]}, 9, {vt[0]}")
    A(f"v_add_u32 {vt[0]}, {sT[1]}, {vt[0]}")
    for j in range(8):
        A(f"global_load_dwordx2 {vP[2*j:2*j+2]}, {vt[0]}, {sWo} offset:{2048*(j>>2) + 128*(j&3)}")
    A(f"v_lshl_add_u32 {vt[0]}, {vLane}, 4, {sT[1]}")
    A(f"s_mov_b32 {sT[0]}, 0x05040100")
    A(f"s_mov_b32 {sT[1]}, 0x07060302")
    A("s_waitcnt vmcnt(0)")
    for tau in range(4):
        for jj in range(4):
            A(f"v_perm_b32 {vP[16+4*tau+jj]}, {vP[2*(2*jj+1) + (tau>>1)]}, {vP[2*(2*jj) + (tau>>1)]}, {sT[tau&1]}")
        A(f"ds_write_b128 {vt[0]}, {vP[16+4*tau:20+4*tau]} offset:{WOP + 1024*tau}")
    A("K2_now:")
    A("K2_noconst:")
    A.c("LDS init: counters/flags 0, keys = out-of-range marker, payload 0")
    A(f"v_mov_b64 {vP[0:2]}, 0")
    A(f"v_mov_b64 {vP[2:4]}, 0")
    A(f"v_mov_b64 {vP[4:6]}, -1")
    A(f"v_mov_b64 {vP[6:8]}, -1")
    A(f"v_lshlrev_b32 {vt[0]}, 4, v0")
    for k in range(3):
        A(f"ds_write_b128 {vt[0]}, {vP[0:4]} offset:{PAY + 16384*k}")
    A(f"v_lshlrev_b32 {vt[1]}, 2, v0")
    A(f"ds_write_b32 {vt[1]}, {vP[0]} offset:{CNT}")
    A(f"v_cmp_gt_u32 vcc, {(CAP*4+128)//16}, v0")
    A(f"s_and_saveexec_b64 {sEn}, vcc")
    A(f"ds_write_b128 {vt[0]}, {vP[4:8]} offset:{KEY}")
    A(f"s_mov_b64 exec, {sEn}")
    A(f"v_and_b32 {vI}, 15, v0")
    A(f"v_add_u32 {vI}, {sBase}, {vI}")
    A(f"s_mov_b32 {sT[0]}, {REG}")
    A(f"v_mul_u32_u24 {vChunk}, {sT[0]}, {vChunk}")
    A(f"v_lshl_add_u32 {vK0}, {vI}, 2, {vChunk}")
    A(f"v_mov_b32 {vOne}, 1")
    A("s_waitcnt lgkmcnt(0)")
    A("s_barrier")
    A("s_waitcnt vmcnt(0)")
    ts()
    A(f"s_cmp_lg_u32 {sSlow}, 0")
    A("s_cbranch_scc1 K2_nocg")
    A(f"v_lshl_or_b32 {vCg[0]}, {vKey[0]}, 16, {vCg[0]}")
    A(f"v_lshl_or_b32 {vCg[1]}, {vKey[1]}, 16, {vCg[1]}")
    A("K2_nocg:")
    A(f"s_mov_b64 {sAny1}, 0")
    for r in range(4):
        A(f"s_cmp_eq_u32 {sR}, {r}")
        A(f"s_cselect_b64 {sEn}, -1, 0")
        A(f"s_cmp_eq_u32 {sSlow}, 0")
        A(f"s_cselect_b64 {sEn}, -1, {sEn}")
        A(f"v_add_u32_sdwa {vt[0]}, {vI}, {vE[r]} dst_sel:DWORD dst_unused:UNUSED_PAD src0_sel:DWORD src1_sel:WORD_0")
        A(f"v_mad_u32_u16 {vKa[r]}, {vE[r]}, {s16}, {vK0} op_sel:[1,0,0,0]")
        A(f"v_cmp_lt_u32_sdwa vcc, {vt[0]}, {vE[r]} src0_sel:DWORD src1_sel:WORD_1")
        A(f"v_lshl_add_u32 {vPa[r]}, {vt[0]}, 4, {vChunk}")
        A(f"s_and_b64 {sM0[2*r:2*r+2]}, vcc, {sEn}")
        A(f"v_add_u32 {vt[0]}, 16, {vt[0]}")
        A(f"v_cmp_lt_u32_sdwa vcc, {vt[0]}, {vE[r]} src0_sel:DWORD src1_sel:WORD_1")
        A(f"s_or_b64 exec, {sM0[2*r:2*r+2]}, 1")
        A(f"buffer_load_dword {vKey[r]}, {vKa[r]}, {rW}, {sCo[r]} offen {ldp}")
        A(f"s_and_b64 {sM1[2*r:2*r+2]}, vcc, {sEn}")
        A(f"s_or_b64 {sAny1}, {sAny1}, {sM1[2*r:2*r+2]}")
        A("s_mov_b64 exec, -1")
    A(f"s_cmp_eq_u64 {sAny1}, 0")
    A("s_cbranch_scc1 K2_noh1")
    for r in range(4):
        A(f"s_mov_b64 exec, {sM1[2*r:2*r+2]}")
        A(f"s_cbranch_execz K2_noh1_{r}")
        A(f"buffer_load_dword {vKey[4+r]}, {vKa[r]}, {rW}, {sCo[r]} offen offset:64 {ldp}")
        A(f"buffer_load_dwordx4 {vP[16+4*r:20+4*r]}, {vPa[r]}, {rW}, {sCo[r]} offen offset:256 {ldp}")
        A(f"K2_noh1_{r}:")
    A("K2_noh1:")
    for r in range(4):
        A(f"s_or_b64 exec, {sM0[2*r:2*r+2]}, 1")
        A(f"buffer_load_dwordx4 {vP[4*r:4*r+4]}, {vPa[r]}, {rW}, {sCo[r]} offen {ldp}")
    A(f"s_waitcnt vmcnt({0 if o.get('k2safe') else 4})")
    ts()
    def byte0(dst, sh, src):
        A(f"v_lshlrev_b32_sdwa {dst}, {sh}, {src} dst_sel:DWORD dst_unused:UNUSED_PAD src0_sel:DWORD src1_sel:BYTE_0")
    for r in range(4):
        A(f"s_mov_b64 exec, {sM0[2*r:2*r+2]}")
        byte0(vt[r], 2, vKey[r])
        A(f"ds_add_rtn_u32 {vRk[r]}, {vt[r]}, {vOne} offset:{CNT}")
    A(f"s_cmp_eq_u64 {sAny1}, 0")
    A("s_cbranch_scc1 K2_noh1b")
    for r in range(4):
        A(f"s_mov_b64 exec, {sM1[2*r:2*r+2]}")
        byte0(vt[r], 2, vKey[4+r])
        A(f"ds_add_rtn_u32 {vRk[4+r]}, {vt[r]}, {vOne} offset:{CNT}")
    A.c("a run with 32 or more records: leave the one-round path")
    A(f"s_and_b32 {sT[0]}, {sAny1[0]}, 0x80008000")
    A(f"s_and_b32 {sT[1]}, {sAny1[1]}, 0x80008000")
    A(f"s_mov_b64 exec, {sT}")
    A(f"v_mov_b32 {vt[0]}, 0")
    A(f"ds_write_b32 {vt[0]}, {vOne} offset:{MISC}")
    A("K2_noh1b:")
    A("s_mov_b64 exec, -1")
    A("s_waitcnt lgkmcnt(0)")
    A("s_barrier")
    ts()
    A(f"s_cmp_lg_u32 {sWave}, 15")
    A("s_cbranch_scc1 K2_noscan")
    A.c("wave 15: lane = node. counts -> 8-edge steps per phase -> positions")
    vc = vKa; vw = V.alloc(8, 2)
    assert vc.i % 2 == 0
    A(f"v_lshlrev_b32 {vt[0]}, 4, {vLane}")
    A(f"ds_read_b128 {vc}, {vt[0]} offset:{CNT}")
    A("s_waitcnt lgkmcnt(0)")
    A(f"v_add_u32 {vc[1]}, {vc[0]}, {vc[1]}")
    A(f"v_add_u32 {vc[2]}, {vc[1]}, {vc[2]}")
    A(f"v_add3_u32 {vc[3]}, {vc[2]}, {vc[3]}, 7")
    A(f"v_lshrrev_b32 {vc[3]}, 3, {vc[3]}")
    A(f"v_add_u32 {vt[1]}, 4, {vc[1]}")
    A(f"v_lshrrev_b32 {vt[1]}, 3, {vt[1]}")
    A(f"v_sub_u32 {vc[3]}, {vc[3]}, {vt[1]}")
    A(f"v_lshl_or_b32 {vt[3]}, {vc[3]}, 16, {vt[1]}")
    A(f"v_mov_b32 {vt[2]}, {vt[3]}")
    scan64(A, vt[2])
    A("s_nop 0")
    A(f"v_readlane_b32 {sT[0]}, {vt[2]}, 63")
    A(f"v_sub_u32 {vt[2]}, {vt[2]}, {vt[3]}")
    A(f"s_lshl_b32 {sT[1]}, {sT[0]}, 16")
    A(f"v_add_u32 {vt[2]}, {sT[1]}, {vt[2]}")
    A(f"v_lshlrev_b32 {vt[0]}, 3, {vLane}")
    A(f"ds_write_b64 {vt[0]}, {vt[2:4]} offset:{SEG}")
    A(f"v_and_b32 {vw[0]}, 0xffff, {vt[2]}")
    A(f"v_add_u32 {vt[1]}, {vw[0]}, {vt[1]}")
    A(f"v_lshrrev_b32 {vw[1]}, 16, {vt[2]}")
    A(f"v_sub_u32 {vw[1]}, {vw[1]}, {vt[1]}")
    A(f"v_lshl_or_b32 {vw[1]}, {vw[1]}, 16, {vt[1]}")
    A(f"v_lshlrev_b32 {vw[1]}, 3, {vw[1]}")
    A(f"v_lshlrev_b32 {vw[0]}, 3, {vw[0]}")
    for i in range(1, 4):
        A(f"v_add_u32 {vw[2*i]}, {vw[0]}, {vc[i-1]}")
        A(f"v_mov_b32 {vw[2*i+1]}, {vw[1]}")
    A(f"v_lshlrev_b32 {vt[0]}, 5, {vLane}")
    A(f"ds_write_b128 {vt[0]}, {vw[0:4]} offset:{TBL}")
    A(f"ds_write_b128 {vt[0]}, {vw[4:8]} offset:{TBL+16}")
    A(f"s_lshr_b32 {sT[1]}, {sT[0]}, 16")
    A(f"s_and_b32 {sT[0]}, {sT[0]}, 0xffff")
    A(f"s_add_u32 {sT[0]}, {sT[0]}, {sT[1]}")
    A(f"s_cmp_le_u32 {sT[0]}, {CAP//8}")
    A("s_cbranch_scc1 K2_fits")
    A(f"v_mov_b32 {vt[0]}, 0")
    A(f"ds_write_b32 {vt[0]}, {vOne} offset:{MISC}")
    A("K2_fits:")
    A("s_waitcnt lgkmcnt(0)")
    A("K2_noscan:")
    A("s_barrier")
    ts()
    vT = vw
    A(f"v_mov_b32 {vt[0]}, 0")
    A(f"ds_read_b32 {vt[0]}, {vt[0]} offset:{MISC}")
    A(f"s_mul_i32 {sT[0]}, {sWave}, 24")
    A(f"v_lshl_add_u32 {vt[1]}, {vLane}, 3, {sT[0]}")
    A(f"ds_read_b64 {vt[2:4]}, {vt[1]} offset:{SEG}")
    for r in range(4):
        byte0(vKa[r], 3, vKey[r])
        A(f"ds_read_b64 {vT[2*r:2*r+2]}, {vKa[r]} offset:{TBL}")
    A(f"s_waitcnt lgkmcnt({0 if o.get('k2safe') else 4})")
    A(f"v_readfirstlane_b32 {sT[0]}, {vt[0]}")
    A(f"v_readlane_b32 {sNxt}, {vt[2]}, 0")
    for a in range(3): A(f"v_readlane_b32 {sPk[a]}, {vt[3]}, {a}")
    A(f"s_cmp_gt_u32 {sT[0]}, {sSlow}")
    A("s_cbranch_scc1 K2_toslow")
    def place(r, key, rk, pay, msk, first):
        A(f"s_mov_b64 exec, {msk}")
        A(f"v_add_u32 {rk}, {rk}, {vT[2*r]}")
        A(f"v_cmp_ge_u32_sdwa vcc, {rk}, {vT[2*r+1]} src0_sel:DWORD src1_sel:WORD_0")
        A(f"v_lshrrev_b32 {vt[0]}, 16, {vT[2*r+1]}")
        A(f"s_nop 0")
        A(f"v_cndmask_b32 {vt[0]}, 0, {vt[0]}, vcc")
        A(f"v_add_lshl_u32 {rk}, {rk}, {vt[0]}, 2")
        A(f"ds_write_b32 {rk}, {key} offset:{KEY}")
        A(f"v_lshlrev_b32 {rk}, 2, {rk}")
    for r in range(4):
        A(f"s_waitcnt lgkmcnt({3-r})")
        place(r, vKey[r], vRk[r], None, sM0[2*r:2*r+2], True)
    A(f"s_cmp_eq_u64 {sAny1}, 0")
    A("s_cbranch_scc1 K2_noh1c")
    for r in range(4):
        A(f"s_mov_b64 exec, {sM1[2*r:2*r+2]}")
        A(f"s_cbranch_execz K2_noh1c_{r}")
        byte0(vt[1], 3, vKey[4+r])
        A(f"ds_read_b64 {vT[2*r:2*r+2]}, {vt[1]} offset:{TBL}")
        A("s_waitcnt lgkmcnt(0)")
        place(r, vKey[4+r], vRk[4+r], None, sM1[2*r:2*r+2], False)
        A(f"ds_write_b128 {vRk[4+r]}, {vP[16+4*r:20+4*r]} offset:{PAY}")
        A(f"K2_noh1c_{r}:")
    A("K2_noh1c:")
    for r in range(4):
        A(f"s_mov_b64 exec, {sM0[2*r:2*r+2]}")
        A(f"s_waitcnt vmcnt({3-r})")
        A(f"ds_write_b128 {vRk[r]}, {vP[4*r:4*r+4]} offset:{PAY}")
    A("s_mov_b64 exec, -1")
    hiP = V.n
    vEsave = vE
    V.reset(mV)
    vu = V.alloc(4, 2)
    vRow = V.alloc(); vTr = V.alloc(2); vKc = V.alloc(); vPc = V.alloc(); vEc = V.alloc()
    vKad = V.alloc(); vPad = V.alloc(); vEad = V.alloc()
    vK4 = V.alloc(4, 2); vAd = V.alloc(4); vX = V.alloc(16, 2); vSh = V.alloc(4, 2); vEa = V.alloc(4, 2); vCf = V.alloc(8, 2); vB = V.alloc(4, 2)
    A("s_waitcnt lgkmcnt(0)")
    A.c("lane constants of the main loop")
    A(f"v_and_b32 {vRow}, 31, v0")
    A(f"v_lshrrev_b32 {vu[0]}, 2, {vRow}")
    A(f"v_and_b32 {vu[0]}, 4, {vu[0]}")
    A(f"v_xor_b32 {vRow}, {vRow}, {vu[0]}")
    A(f"v_lshlrev_b32 {vRow}, 4, {vRow}")
    A(f"v_bfe_u32 {vu[0]}, v0, 4, 2")
    A(f"v_bfe_u32 {vu[1]}, v0, 2, 2")
    A(f"v_and_b32 {vu[2]}, 3, v0")
    A(f"v_mul_u32_u24 {vu[3]}, 1056, {vu[0]}")
    A(f"v_lshl_add_u32 {vu[3]}, {vu[1]}, 7, {vu[3]}")
    A(f"v_lshl_add_u32 {vu[3]}, {vu[2]}, 3, {vu[3]}")
    A(f"v_add_u32 {vu[3]}, {sRing[0]}, {vu[3]}")
    A(f"v_lshrrev_b32 {vu[1]}, 1, {vu[1]}")
    A(f"v_lshlrev_b32 {vu[1]}, 6, {vu[1]}")
    A(f"v_add_u32 {vTr[0]}, {vu[3]}, {vu[1]}")
    A(f"v_xor_b32 {vu[1]}, 64, {vu[1]}")
    A(f"v_add_u32 {vTr[1]}, {vu[3]}, {vu[1]}")
    A(f"v_bfe_u32 {vKc}, v0, 5, 1")
    A(f"v_lshlrev_b32 {vKc}, 4, {vKc}")
    A(f"v_lshlrev_b32 {vPc}, 4, {vu[0]}")
    A(f"v_lshl_add_u32 {vEc}, {vu[2]}, 1, {vPc}")
    A(f"s_lshr_b32 {sSt1}, {sNxt}, 16")
    A(f"s_and_b32 {sNxt}, {sNxt}, 0xffff")
    A(f"s_add_u32 {sT[0]}, {sPk[0]}, {sPk[1]}")
    A(f"s_add_u32 {sT[0]}, {sT[0]}, {sPk[2]}")
    A(f"s_lshr_b32 {sT[1]}, {sT[0]}, 16")
    A(f"s_and_b32 {sT[0]}, {sT[0]}, 0xffff")
    A(f"s_add_u32 {sEnd0}, {sNxt}, {sT[0]}")
    A(f"s_add_u32 {sRem}, {sT[0]}, {sT[1]}")
    A(f"s_cmp_eq_u32 {sNxt}, {sEnd0}")
    A(f"s_cselect_b32 {sNxt}, {sSt1}, {sNxt}")
    A("s_barrier")
    ts()
    A(f"s_cmp_eq_u32 {sRem}, 0")
    A("s_cbranch_scc1 K2_done")
    def rd_keys():
        A(f"s_lshl_b32 {sKo}, {sNxt}, 5")
        A(f"v_add_u32 {vKad}, {sKo}, {vKc}")
        A(f"ds_read_b128 {vK4}, {vKad} offset:{KEY}")
    def rd_pay():
        A(f"s_lshl_b32 {sPo}, {sNxt}, 7")
        A(f"v_add_u32 {vPad}, {sPo}, {vPc}")
        A(f"v_add_u32 {vEad}, {sPo}, {vEc}")
        A(f"ds_read_b64 {vSh[0:2]}, {vPad} offset:{PAY}")
        A(f"ds_read_b64 {vSh[2:4]}, {vPad} offset:{PAY+64}")
        A(f"ds_read_u16_d16_hi {vEa[0]}, {vEad} offset:{PAY+8}")
        A(f"ds_read_u16_d16_hi {vEa[2]}, {vEad} offset:{PAY+72}")
    def adv():
        A(f"s_add_u32 {sNxt}, {sNxt}, 1")
        A(f"s_cmp_eq_u32 {sNxt}, {sEnd0}")
        A(f"s_cselect_b32 {sNxt}, {sSt1}, {sNxt}")
    def addrs():
        for k in range(4):
            A(f"v_mad_u32_u16 {vAd[k]}, {vK4[k]}, {s512}, {vRow} op_sel:[1,0,0,0]")
    def dma():
        for k in range(4):
            A(f"s_mov_b32 m0, {sRing[k]}")
            A("s_nop 0")
            A(f"buffer_load_dwordx4 {vAd[k]}, {rX}, 0 offen lds")
    def coef():
        A(f"v_mfma_f32_4x4x4_16b_bf16 {vCf[0:4]}, {vCg}, {vSh[0:2]}, 0")
        A(f"v_mfma_f32_4x4x4_16b_bf16 {vCf[4:8]}, {vCg}, {vSh[2:4]}, 0")
        addrs()
        A("s_nop 7" if o.get('msafe') else "s_nop 0")
        for i in range(4):
            A(f"v_pk_mul_f32 {vCf[2*i:2*i+2]}, {vCf[2*i:2*i+2]}, {vEa[i&2:(i&2)+2]} op_sel_hi:[1,0]")
        for i in range(4): A(f"v_cvt_pk_bf16_f32 {vB[i]}, {vCf[2*i]}, {vCf[2*i+1]}")
    rd_keys()
    rd_pay()
    A(f"s_waitcnt lgkmcnt({0 if o.get('msafe') else 4})")
    addrs()
    dma()
    adv()
    rd_keys()
    A("s_waitcnt lgkmcnt(0)")
    coef()
    A(f"s_mov_b32 {sPh}, 0")
    A("K2_phase:")
    for a in range(3):
        A(f"s_and_b32 {sCnt}, {sPk[a]}, 0xffff")
        A(f"s_cbranch_scc0 K2_seg{a}_end")
        A(f"K2_seg{a}:")
        A("s_waitcnt vmcnt(0)")
        if o.get('dsafe'): A("s_nop 15\ns_nop 15")
        for t in range(4):
            for h in range(2):
                A(f"ds_read_b64_tr_b16 {vX[4*t+2*h:4*t+2*h+2]}, {vTr[t>>1]} offset:{h*512 + (t&1)*32}")
        A(f"s_sub_u32 {sRem}, {sRem}, 1")
        A(f"s_cmp_eq_u32 {sRem}, 0")
        A("s_waitcnt lgkmcnt(0)")
        A(f"s_cbranch_scc1 K2_seg{a}_last")
        dma()
        rd_pay()
        adv()
        rd_keys()
        for t in range(4):
            A(f"v_mfma_f32_16x16x32_bf16 {vAcc[16*a+4*t:16*a+4*t+4]}, {vX[4*t:4*t+4]}, {vB}, {vAcc[16*a+4*t:16*a+4*t+4]}")
        A("s_waitcnt lgkmcnt(0)")
        coef()
        A(f"s_sub_u32 {sCnt}, {sCnt}, 1")
        A(f"s_cmp_lg_u32 {sCnt}, 0")
        A(f"s_cbranch_scc1 K2_seg{a}")
        A(f"K2_seg{a}_end:")
        A(f"s_lshr_b32 {sPk[a]}, {sPk[a]}, 16")
    A(f"s_add_u32 {sPh}, {sPh}, 1")
    A(f"s_cmp_lt_u32 {sPh}, 2")
    A("s_cbranch_scc1 K2_phase")
    A("s_branch K2_done")
    for a in range(3):
        A(f"K2_seg{a}_last:")
        for t in range(4):
            A(f"v_mfma_f32_16x16x32_bf16 {vAcc[16*a+4*t:16*a+4*t+4]}, {vX[4*t:4*t+4]}, {vB}, {vAcc[16*a+4*t:16*a+4*t+4]}")
        if a < 2: A("s_branch K2_done")
    A("K2_done:")
    if o.get('esafe'): A("s_nop 15\ns_nop 15\ns_nop 15")
    ts()
    A(f"s_cmp_lg_u32 {sSlow}, 0")
    A("s_cbranch_scc1 K2_nextround")
    A("K2_epi:")
    A(f"s_cmp_ge_u32 {sWave}, 14")
    A("s_cbranch_scc1 K2_fin")
    V.reset(mV)
    vu = V.alloc(2, 2); vW = V.alloc(32, 2); vWf = V.alloc(16, 2); vA = V.alloc(8, 2); vo = V.alloc(2, 2)
    A(f"v_lshlrev_b32 {vu[0]}, 4, {vLane}")
    for i in range(4):
        A(f"ds_read_b128 {vWf[4*i:4*i+4]}, {vu[0]} offset:{WRF + 1024*i}")
    for i in range(8):
        A(f"ds_read_b128 {vW[4*i:4*i+4]}, {vu[0]} offset:{WOP + 1024*i}")
    A(f"v_lshlrev_b32 {vu[1]}, 3, {vLane}")
    A(f"s_mul_i32 {sT[0]}, {sWave}, 3")
    A(f"s_add_u32 {sT[0]}, {sT[0]}, {sN0}")
    A("s_waitcnt lgkmcnt(0)")
    for a in range(3):
        A(f"s_cmp_ge_u32 {sT[0]}, {sN1}")
        A("s_cbranch_scc1 K2_fin")
        acc = vAcc[16*a:16*a+16]
        for i in range(8):
            A(f"v_pk_mul_f32 {acc[2*i:2*i+2]}, {acc[2*i:2*i+2]}, {vWf[2*i:2*i+2]}")
        for i in range(8):
            A(f"v_cvt_pk_bf16_f32 {vA[i]}, {acc[2*i]}, {acc[2*i+1]}")
        A(f"s_lshl_b32 {sT[1]}, {sT[0]}, 9")
        A(f"s_add_u32 {sT[0]}, {sT[0]}, 1")
        for tau in range(4):
            A(f"v_mfma_f32_16x16x32_bf16 {acc[4*tau:4*tau+4]}, {vA[0:4]}, {vW[4*tau:4*tau+4]}, 0")
        for tau in range(4):
            A(f"v_mfma_f32_16x16x32_bf16 {acc[4*tau:4*tau+4]}, {vA[4:8]}, {vW[16+4*tau:20+4*tau]}, {acc[4*tau:4*tau+4]}")
        A("s_nop 15" if o.get('esafe') else "s_nop 4")
        for tau in range(4):
            A(f"v_pk_add_f32 {acc[4*tau:4*tau+2]}, {acc[4*tau:4*tau+2]}, {acc[4*tau+2:4*tau+4]}")
            A(f"v_add_f32 {acc[4*tau]}, {acc[4*tau]}, {acc[4*tau+1]}")
        A(f"v_cvt_pk_bf16_f32 {vo[0]}, {acc[0]}, {acc[4]}")
        A(f"v_cvt_pk_bf16_f32 {vo[1]}, {acc[8]}, {acc[12]}")
        A(f"buffer_store_dwordx2 {vo}, {vu[1]}, {rO}, {sT[1]} offen")
    A("K2_fin:")
    if o.get('ts'):
        ts()
        A("s_waitcnt vmcnt(0)")
        ts()
        ts.flush(vu[0], sWave, rW)
    A("K2_end:")
    A("s_endpgm")
    A("K2_toslow:")
    A.c("some run is long or the bin is too full: redo in rounds of (64 runs x 32 records)")
    A("s_waitcnt vmcnt(0) lgkmcnt(0)")
    for r in range(4):
        A(f"v_lshrrev_b32 {vt[1]}, 16, {vE[r]}")
        A(f"v_and_b32 {vt[2]}, 0xffff, {vE[r]}")
        A(f"v_sub_u32 {vt[1]}, {vt[1]}, {vt[2]}")
        if r == 0: A(f"v_mov_b32 {vt[0]}, {vt[1]}")
        else: A(f"v_max_u32 {vt[0]}, {vt[0]}, {vt[1]}")
    A(f"v_mov_b32 {vt[1]}, 0")
    A(f"ds_max_u32 {vt[1]}, {vt[0]} offset:{MISC+4}")
    A("s_waitcnt lgkmcnt(0)")
    A("s_barrier")
    A(f"ds_read_b32 {vt[0]}, {vt[1]} offset:{MISC+4}")
    A("s_waitcnt lgkmcnt(0)")
    A(f"v_readfirstlane_b32 {sMaxN}, {vt[0]}")
    A(f"s_mov_b32 {sSlow}, 1")
    A("s_barrier")
    A("s_branch K2_round")
    A("K2_nextround:")
    A(f"s_add_u32 {sBase}, {sBase}, 32")
    A(f"s_cmp_lt_u32 {sBase}, {sMaxN}")
    A("s_cbranch_scc1 K2_again")
    A(f"s_mov_b32 {sBase}, 0")
    A(f"s_add_u32 {sR}, {sR}, 1")
    A(f"s_cmp_ge_u32 {sR}, 4")
    A("s_cbranch_scc1 K2_epi")
    A("K2_again:")
    A("s_waitcnt vmcnt(0) lgkmcnt(0)")
    A("s_barrier")
    A("s_branch K2_round")
    return A.text() + kd(name, V.hi, S.hi), LDS

HEAD = open("gather_scatter__tensor_product_equiv_mace__graph.s.ref").read().split("; Override launch")[0]

def build(o):
    k1, l1 = gen_k1(o); k2, l2 = gen_k2(o)
    t = HEAD
    t += f"; @launch kernel=part_kernel grid=(256,1,1) block=(640,1,1) lds={l1}\n"
    t += f"; @launch kernel=gather_scatter__tensor_product_equiv_mace__graph_kernel grid=(256,1,1) block=(1024,1,1) lds={l2}\n"
    t += '.amdgcn_target "amdgcn-amd-amdhsa--gfx950"\n.text\n' + k1 + k2
    return t

if __name__ == "__main__":
    o = dict(pf=0.6)
    for a in sys.argv[2:]:
        k, v = a.split("=")
        try: v = eval(v)
        except Exception: pass
        o[k] = v
    open(sys.argv[1], "w").write(build(o))
```

```python
import numpy as np
def make_idx(W, D, steps, P, B, G=256, N=10000, seed=0):
    rng = np.random.default_rng(seed)
    E = 640000
    dst = rng.integers(0, N, E); src = rng.integers(0, N, E)
    if P == 0:
        P = 1; B = 1; src = src // 2
    key = dst * B + (src * B) // N
    o = np.argsort(key, kind='stable')
    src_s = src[o]; cnt = np.bincount(dst, minlength=N); st = np.concatenate([[0], np.cumsum(cnt)])
    out = np.full((G, W, steps + D, 8), 0xFFFF, dtype=np.uint32)
    mx = 0; real = 0
    for b in range(G):
        n0 = (b * 625 + 15) >> 4; n1 = ((b + 1) * 625 + 15) >> 4
        ph = [[] for _ in range(P)]
        for n in range(n0, n1):
            s = src_s[st[n]:st[n+1]]
            S = (len(s) + 7) // 8
            pad = np.full(S * 8, 0xFFFF, dtype=np.uint32); pad[:len(s)] = s
            pad = pad.reshape(S, 8)
            for sg in range(S):
                p = min(P - 1, (sg * P + (n % P)) // S) if P > 1 else 0
                ph[p].append(pad[sg])
        wl = [[] for _ in range(W)]
        cum = 0
        tot = sum(len(x) for x in ph)
        for p in range(P):
            Lp = len(ph[p])
            for w in range(W):
                ww = (w + p * 3) % W
                a = Lp * w // W; e = Lp * (w + 1) // W
                wl[ww] += ph[p][a:e]
        g = (b % 32) * 8 + b // 32
        for w in range(W):
            k = min(len(wl[w]), steps)
            mx = max(mx, len(wl[w]))
            out[g, w, :k] = np.array(wl[w][:k])
            out[g, w, steps + D - 1, :] = k
    real = (out[:, :, :steps] != 0xFFFF).sum()
    return out, mx, real


def make_idx_static(W, D, steps, P, B, NPW, balance, G=256, N=10000, seed=0):
    rng = np.random.default_rng(seed)
    E = 640000
    dst = rng.integers(0, N, E); src = rng.integers(0, N, E)
    key = dst * B + (src * B) // N
    o = np.argsort(key, kind='stable')
    src_s = src[o]; cnt = np.bincount(dst, minlength=N); st = np.concatenate([[0], np.cumsum(cnt)])
    out = np.full((G, W, steps + D, 8), 0xFFFF, dtype=np.uint32)
    mx = 0
    for b in range(G):
        n0 = (b * 625 + 15) >> 4; n1 = ((b + 1) * 625 + 15) >> 4
        nodes = list(range(n0, n1))
        own = [[] for _ in range(W)]
        if balance == 0:
            for i, n in enumerate(nodes): own[i // NPW].append(n)
        elif balance == 1:
            nodes.sort(key=lambda n: -cnt[n])
            nn = len(nodes)
            WW = W
            if NPW == 3:
                WW = 13
                if nn == 40:
                    own[13].append(nodes[0]); nodes = nodes[1:]
                for i, n in enumerate(nodes):
                    r, c = divmod(i, WW)
                    if r == 0: w = c
                    elif r == 1: w = (c + 7) % 13
                    else:
                        w = [x for x in range(13) if 18 - x - ((x + 6) % 13) == c][0]
                    own[w].append(n)
            else:
                for i, n in enumerate(nodes):
                    r, c = divmod(i, WW)
                    own[c if r % 2 == 0 else WW - 1 - c].append(n)
        else:
            nodes.sort(key=lambda n: -cnt[n])
            load = [0] * W
            for n in nodes:
                w = min((x for x in range(W) if len(own[x]) < NPW), key=lambda x: load[x])
                own[w].append(n); load[w] += (cnt[n] + 7) // 8
        g = (b % 32) * 8 + b // 32
        for w in range(W):
            ph = [[] for _ in range(P)]
            for n in own[w]:
                s = src_s[st[n]:st[n+1]]
                S = (len(s) + 7) // 8
                pad = np.full(S * 8, 0xFFFF, dtype=np.uint32); pad[:len(s)] = s
                pad = pad.reshape(S, 8)
                for sg in range(S):
                    p = min(P - 1, (sg * P + (n % P)) // S) if P > 1 else 0
                    ph[p].append(pad[sg])
            wl = sum(ph, [])
            mx = max(mx, len(wl))
            k = min(len(wl), steps)
            if k: out[g, w, :k] = np.array(wl[:k])
            out[g, w, steps + D - 1, :] = max(k, D + 1)
    real = (out[:, :, :steps] != 0xFFFF).sum()
    return out, mx, real

_cache = {}
def make_idx_thr(steps, thr, order, balance, G=256, N=10000, seed=0, rnd=4):
    W = 14; D = 1
    if 'g' not in _cache:
        rng = np.random.default_rng(seed)
        E = 640000
        dst = rng.integers(0, N, E); src = rng.integers(0, N, E)
        o = np.argsort(dst, kind='stable')
        cnt = np.bincount(dst, minlength=N)
        _cache['g'] = (src[o], cnt, np.concatenate([[0], np.cumsum(cnt)]))
    src_s, cnt, st = _cache['g']
    out = np.full((G, W, steps + D, 8), 0xFFFF, dtype=np.uint32)
    mx = 0
    for b in range(G):
        n0 = (b * 625 + 15) >> 4; n1 = ((b + 1) * 625 + 15) >> 4
        cls = [[n0 + 3 * w + a for w in range(13)] for a in range(3)]
        if balance:
            key = (lambda n: -cnt[n]) if balance == 1 else (lambda n: -min(max((cnt[n] + 7) // 8, 7), 10))
            cls = [sorted(c, key=key) for c in cls]
            own = [[cls[0][w], cls[1][(w + 6) % 13], cls[2][18 - w - (w + 6) % 13]] for w in range(13)]
        else:
            own = [[cls[a][w] for a in range(3)] for w in range(13)]
        own.append([n0 + 39] if n1 - n0 == 40 else [])
        g = (b % 32) * 8 + b // 32
        for w in range(W):
            seg = {}
            for a, n in enumerate(own[w]):
                s = src_s[st[n]:st[n+1]]
                lo = s[s < thr[a] * N]; hi = s[s >= thr[a] * N]
                S = (len(s) + 7) // 8
                pad = np.full(S * 8, 0xFFFF, dtype=np.uint32); pad[:len(s)] = np.concatenate([lo, hi])
                pad = pad.reshape(S, 8); S0 = (len(lo) + rnd) // 8
                seg[(a, 0)] = list(pad[:S0]); seg[(a, 1)] = list(pad[S0:])
            wl = sum((seg.get(k, []) for k in order), [])
            mx = max(mx, len(wl)); k = min(len(wl), steps)
            if k: out[g, w, :k] = np.array(wl[:k])
            out[g, w, steps + D - 1, :] = max(k, D + 1)
    return out, mx, (out[:, :, :steps] != 0xFFFF).sum()

def make_idx_s2(steps, thr, G=256, N=10000, seed=0, bal=1):
    W = 14; D = 1
    if 'g' not in _cache: make_idx_thr(33, (.5, .5, .5), [(0, 0)], 0)
    src_s, cnt, st = _cache['g']
    out = np.full((G, W, steps + D, 8), 0xFFFF, dtype=np.uint32)
    mx = 0
    for g in range(G):
        x = g % 8; half = x >> 2; grp = (x & 3) * 32 + g // 8
        n0 = (grp * 625 + 7) >> 3; n1 = ((grp + 1) * 625 + 7) >> 3
        L = {}
        for n in range(n0, n1):
            s = src_s[st[n]:st[n+1]]
            L[n] = s[(s >= N // 2) == bool(half)]
        nodes = sorted(L, key=lambda n: -len(L[n]))
        own = [[] for _ in range(W)]; load = [0] * 13
        if len(nodes) > 78:
            own[13] = nodes[:len(nodes) - 78]; nodes = nodes[len(nodes) - 78:]
        if bal == 1:
            for n in nodes:
                w = min((x_ for x_ in range(13) if len(own[x_]) < 6), key=lambda x_: load[x_])
                own[w].append(n); load[w] += (len(L[n]) + 7) // 8
        else:
            nodes = sorted(nodes); pr = [(nodes[i], nodes[39 + i]) for i in range(39)]
            cls = [sorted(pr[a::3], key=lambda p: -((len(L[p[0]]) + 7) // 8 + (len(L[p[1]]) + 7) // 8)) for a in range(3)]
            for w in range(13):
                t = [cls[0][w], cls[1][(w + 6) % 13], cls[2][18 - w - (w + 6) % 13]]
                own[w] = [p[0] for p in t] + [p[1] for p in t]
        for w in range(W):
            first = []; rest = []
            for a, n in enumerate(own[w]):
                s = L[n]; S = (len(s) + 7) // 8
                if a < len(thr):
                    t = half * N // 2 + thr[a] * N // 2
                    lo = s[s < t]; s = np.concatenate([lo, s[s >= t]]); S0 = (len(lo) + 4) // 8
                else: S0 = 0
                pad = np.full(S * 8, 0xFFFF, dtype=np.uint32); pad[:len(s)] = s; pad = pad.reshape(S, 8)
                first += list(pad[:S0]); rest += list(pad[S0:])
            wl = first + rest
            mx = max(mx, len(wl)); k = min(len(wl), steps)
            if k: out[g, w, :k] = np.array(wl[:k])
            out[g, w, steps + D - 1, :] = max(k, D + 1)
    return out, mx, (out[:, :, :steps] != 0xFFFF).sum()

def make_idx_sorted(steps, P, G=256, N=10000, first=0):
    W = 14; D = 1
    if 'g' not in _cache: make_idx_thr(33, (.5, .5, .5), [(0, 0)], 0)
    src_s, cnt, st = _cache['g']
    out = np.full((G, W, steps + D, 8), 0xFFFF, dtype=np.uint32); mx = 0
    for b in range(G):
        n0 = (b * 625 + 15) >> 4; n1 = ((b + 1) * 625 + 15) >> 4
        cls = [sorted([n0 + 3 * w + a for w in range(13)], key=lambda n: -cnt[n]) for a in range(3)]
        own = [[cls[0][w], cls[1][(w + 6) % 13], cls[2][18 - w - (w + 6) % 13]] for w in range(13)]
        own.append([n0 + 39] if n1 - n0 == 40 else [])
        g = (b % 32) * 8 + b // 32
        for w in range(W):
            items = []
            for a, n in enumerate(own[w]):
                s = np.sort(src_s[st[n]:st[n+1]]); S = (len(s) + 7) // 8
                pad = np.full(S * 8, 0xFFFF, dtype=np.uint32); pad[:len(s)] = s; pad = pad.reshape(S, 8)
                for sg in range(S):
                    key = (pad[sg][0], a) if P == 0 else (min(P - 1, (sg * P + a * P // 3) // S), a, sg)
                    items.append((key, pad[sg]))
            items.sort(key=lambda t: t[0]); wl = [t[1] for t in items]
            mx = max(mx, len(wl)); k = min(len(wl), steps)
            if k: out[g, w, :k] = np.array(wl[:k])
            out[g, w, steps + D - 1, :] = max(k, D + 1)
    return out, mx, (out[:, :, :steps] != 0xFFFF).sum()
```

```python
import sys, itertools
import numpy as np
from bl import *
from mk import *

def gen(name, mode, W, D, steps, nrows, pfrac, compute=True, ref=0, kq=0):
    L = []
    A = L.append
    lds = mode == 'lds'
    RING = W * D * 4224 if lds else 0
    IDX0 = RING
    nidx = W * (steps + D) * 8
    PAY0 = IDX0 + nidx * 4 + W * 64 * 4
    AGG0 = PAY0 + nidx * 16
    TOT = AGG0 + (0 if compute == 8 else 40960)
    A(f".globl {name}\n.p2align 8\n.type {name},@function\n{name}:")
    A("s_load_dwordx4 s[4:7], s[0:1], 0")
    A("s_load_dwordx2 s[32:33], s[0:1], 16")
    A("v_lshrrev_b32 v5, 6, v0")
    A("s_nop 0")
    A("v_readfirstlane_b32 s31, v5")
    A("v_and_b32 v5, 63, v0")
    if lds:
        A("v_and_b32 v1, 31, v0")
        A("v_lshrrev_b32 v6, 2, v1")
        A("v_and_b32 v6, 4, v6")
        A("v_xor_b32 v1, v1, v6")
        A("v_lshlrev_b32 v1, 4, v1")
        A(f"s_mul_i32 s30, s31, {D*4224}")
        A("v_lshrrev_b32 v24, 4, v5")
        A("v_mul_u32_u24 v24, 1056, v24")
        A("v_bfe_u32 v25, v5, 2, 2")
        A("v_lshlrev_b32 v26, 7, v25")
        A("v_add_u32 v24, v24, v26")
        A("v_and_b32 v26, 3, v5")
        A("v_lshl_add_u32 v24, v26, 3, v24")
        A("v_add_u32 v24, s30, v24")
        A("v_lshrrev_b32 v25, 1, v25")
        A("v_lshlrev_b32 v25, 6, v25")
        A("v_add_u32 v26, v24, v25")
        A("v_xor_b32 v25, 64, v25")
        A("v_add_u32 v27, v24, v25")
    else:
        A("v_and_b32 v1, 15, v0")
        A("v_lshlrev_b32 v1, 4, v1")
    A("s_waitcnt lgkmcnt(0)")
    A("s_mov_b32 s8, s4\ns_and_b32 s9, s5, 0xffff\ns_mov_b32 s10, %d\ns_mov_b32 s11, 0x20000" % (nrows*512))
    A("s_mov_b32 s12, s6\ns_and_b32 s13, s7, 0xffff\ns_mov_b32 s14, 0x1000000\ns_mov_b32 s15, 0x20000")
    A("s_mov_b32 s36, s32\ns_and_b32 s37, s33, 0xffff\ns_mov_b32 s38, 0x1000000\ns_mov_b32 s39, 0x20000")
    for i in range(16): A(f"v_mov_b32 v{8+i}, 0")
    A("v_lshlrev_b32 v6, 4, v5")
    A("buffer_load_dwordx2 v[54:55], v6, s[8:11], 0 offen")
    for i in range(4): A(f"buffer_load_dwordx4 v[{64+4*i}:{67+4*i}], v6, s[8:11], 0 offen offset:{1024*i}")
    A(f"s_mul_i32 s3, s2, {nidx*4}")
    A("v_lshlrev_b32 v5, 2, v0")
    for k in range((nidx + W*64 - 1) // (W*64)):
        A(f"buffer_load_dword v6, v5, s[36:39], s3 offen")
        A(f"v_lshlrev_b32 v7, 2, v5")
        A("v_mov_b32 v56, 0x3c803d00\nv_mov_b32 v57, 0xbd203c40\nv_xor_b32 v58, v56, v7\nv_and_b32 v58, 0x807f807f, v58\nv_or_b32 v58, 0x3c003c00, v58\nv_mov_b32 v59, v58")
        A(f"v_add_u32 v60, {PAY0}, v7")
        A(f"v_add_u32 v7, {IDX0}, v5")
        A("s_waitcnt vmcnt(0)")
        A("ds_write_b32 v7, v6")
        A(f"v_cmp_gt_u32 vcc, {AGG0}, v60")
        A("s_and_saveexec_b64 s[26:27], vcc")
        A("ds_write_b128 v60, v[56:59]")
        A("s_mov_b64 exec, s[26:27]")
        A(f"v_add_u32 v5, {W*64*4}, v5")
    A(f"s_mul_i32 s3, s31, {(steps+D)*32}")
    A(f"s_add_u32 s40, s3, {IDX0}")
    if lds:
        A("v_bfe_u32 v2, v0, 5, 1")
        A("v_lshlrev_b32 v2, 4, v2")
    else:
        A("v_bfe_u32 v2, v0, 4, 2")
        A("v_lshlrev_b32 v2, 3, v2")
    A("v_add_u32 v2, s40, v2")
    A("s_lshl_b32 s3, s3, 2")
    A(f"s_add_u32 s3, s3, {PAY0}")
    A("v_bfe_u32 v4, v0, 4, 2")
    A(f"v_lshlrev_b32 v4, {4 if lds else 5}, v4")
    A("v_add_u32 v4, s3, v4")
    A("v_and_b32 v7, 3, v0")
    A("v_lshl_add_u32 v7, v7, 1, v4")
    hoff = 64 if lds else 16
    A("v_and_b32 v61, 63, v0")
    A("v_bfe_u32 v62, v0, 4, 2")
    A("v_and_b32 v61, 15, v61")
    A("v_lshlrev_b32 v61, 2, v61")
    A("v_lshl_add_u32 v61, v62, 8, v61")
    A(f"s_mul_i32 s3, s31, 2048")
    A(f"s_add_u32 s3, s3, {AGG0}")
    A("v_add_u32 v61, s3, v61")
    A("v_mov_b32 v62, 0\nv_mov_b32 v63, 0")
    for i in range(4): A(f"v_mov_b32 v{28+i}, " + ("0" if compute == 6 else f"v{64+i}"))
    if pfrac > 0:
        per = int(nrows * pfrac) * 512 // 32 // 128 * 128
        A(f"s_lshr_b32 s3, s2, 3")
        A(f"s_mul_i32 s3, s3, {per}")
        A(f"v_lshlrev_b32 v5, 7, v0")
        n = (per + W*64*128 - 1) // (W*64*128)
        for k in range(n):
            A(f"v_cmp_gt_u32 vcc, {per}, v5")
            A("s_and_saveexec_b64 s[26:27], vcc")
            A(f"buffer_load_dword v{32+k%8}, v5, s[8:11], s3 offen")
            A("s_mov_b64 exec, s[26:27]")
            A(f"v_add_u32 v5, {W*64*128}, v5")
    A("s_waitcnt vmcnt(0) lgkmcnt(0)")
    A("s_barrier")
    A("s_memrealtime s[20:21]")
    A("s_memtime s[28:29]")
    A("s_waitcnt lgkmcnt(0)")
    A("v_mov_b32 v3, s40")
    A(f"ds_read_b32 v3, v3 offset:{(steps+D)*32-32}")
    A("s_waitcnt lgkmcnt(0)")
    A("v_readfirstlane_b32 s22, v3")
    A("s_mov_b32 s41, 0")
    A(f"s_sub_i32 s44, {ref}, s22")
    A("s_max_i32 s44, s44, 0")
    A(f"s_mul_i32 s44, s44, {kq}")
    A("s_mov_b32 s43, 0")
    A("v_and_b32 v92, 63, v0")
    A("v_lshlrev_b32 v92, 4, v92")
    A(f"s_mul_i32 s3, s31, 2048")
    A(f"s_add_u32 s3, s3, {AGG0}")
    A("v_add_u32 v92, s3, v92")
    BUF = 80
    def rdkeys(off):
        if lds: A(f"ds_read_b128 v[48:51], v2 offset:{off}")
        else: A(f"ds_read_b64 v[48:49], v2 offset:{off}")
    def issue(b):
        if lds:
            for k in range(4):
                A(f"s_add_u32 m0, s34, {k*1056}")
                A(f"v_lshl_add_u32 v3, v{48+k}, 9, v1")
                A(f"buffer_load_dwordx4 v3, s[8:11], 0 offen lds")
        else:
            r = BUF + 16 * b
            A(f"v_lshl_add_u32 v3, v48, 9, v1")
            A(f"v_lshl_add_u32 v5, v49, 9, v1")
            A(f"buffer_load_dwordx4 v[{r}:{r+3}], v3, s[8:11], 0 offen")
            A(f"buffer_load_dwordx4 v[{r+8}:{r+11}], v3, s[8:11], 0 offen offset:256")
            A(f"buffer_load_dwordx4 v[{r+4}:{r+7}], v5, s[8:11], 0 offen")
            A(f"buffer_load_dwordx4 v[{r+12}:{r+15}], v5, s[8:11], 0 offen offset:256")
    def adv():
        if lds and D > 1:
            A(f"s_add_u32 s35, s35, 4224")
            A(f"s_cmp_eq_u32 s35, {D*4224}")
            A(f"s_cselect_b32 s35, 0, s35")
            A(f"s_add_u32 s34, s35, s30")
    def coef_reads():
        if compute in (0, 5, 6): return
        A(f"ds_read_b64 v[56:57], v4")
        A(f"ds_read_b64 v[58:59], v4 offset:{hoff}")
        A(f"ds_read_u16_d16_hi v62, v7 offset:8")
        A(f"ds_read_u16_d16_hi v63, v7 offset:{hoff+8}")
        A("v_add_u32 v4, 128, v4")
        A("v_add_u32 v7, 128, v7")
    def coef_math():
        if compute in (0, 5, 6, 7): return
        c = 80 if lds else 40
        A(f"v_mfma_f32_4x4x4_16b_bf16 v[{c}:{c+3}], v[54:55], v[56:57], 0")
        A(f"v_mfma_f32_4x4x4_16b_bf16 v[{c+4}:{c+7}], v[54:55], v[58:59], 0")
        A("s_nop 3")
        A(f"v_pk_mul_f32 v[{c}:{c+1}], v[{c}:{c+1}], v[62:63] op_sel_hi:[1,0]")
        A(f"v_pk_mul_f32 v[{c+2}:{c+3}], v[{c+2}:{c+3}], v[62:63] op_sel_hi:[1,0]")
        A(f"v_pk_mul_f32 v[{c+4}:{c+5}], v[{c+4}:{c+5}], v[62:63] op_sel:[0,1]")
        A(f"v_pk_mul_f32 v[{c+6}:{c+7}], v[{c+6}:{c+7}], v[62:63] op_sel:[0,1]")
        for i in range(4): A(f"v_cvt_pk_bf16_f32 v{28+i}, v{c+2*i}, v{c+2*i+1}")
    def trreads():
        if D > 1:
            A("v_add_u32 v52, s35, v26")
            A("v_add_u32 v53, s35, v27")
        for t in range(4):
            for h in range(2):
                A(f"ds_read_b64_tr_b16 v[{32+4*t+2*h}:{32+4*t+2*h+1}], v{(52 if D > 1 else 26) + (t>>1)} offset:{h*512 + (t&1)*32}")
    def mm(b):
        if compute in (0, 4, 7): return
        if lds:
            for t in range(4):
                A(f"v_mfma_f32_16x16x32_bf16 v[{8+4*t}:{8+4*t+3}], v[28:31], v[{32+4*t}:{32+4*t+3}], v[{8+4*t}:{8+4*t+3}]")
        elif mode == 'reg16':
            r = BUF + 16 * b
            for h in range(2):
                for t in range(4):
                    rr = r + 8*(t>>1) + 4*h + 2*(t&1)
                    A(f"v_mfma_f32_16x16x16_bf16 v[{8+4*t}:{8+4*t+3}], v[{28+2*h}:{29+2*h}], v[{rr}:{rr+1}], v[{8+4*t}:{8+4*t+3}]")
        else:
            r = BUF + 16 * b
            A(f"v_swap_b32 v{r+2}, v{r+4}\nv_swap_b32 v{r+3}, v{r+5}\nv_swap_b32 v{r+10}, v{r+12}\nv_swap_b32 v{r+11}, v{r+13}")
            A("s_nop 0")
            for t in range(4):
                A(f"v_mfma_f32_16x16x32_bf16 v[{8+4*t}:{8+4*t+3}], v[28:31], v[{r+4*t}:{r+4*t+3}], v[{8+4*t}:{8+4*t+3}]")
    fl = [0]
    def flush():
        if compute in (0, 5, 6, 7, 8): return
        fl[0] += 1
        A("s_add_u32 s41, s41, 1")
        A("s_and_b32 s42, s41, 3")
        A(f"s_cbranch_scc1 {name}_nf{fl[0]}")
        A("s_nop 4")
        for t in range(4):
            a = 8 + 4*t; w = 64 + 4*t
            A(f"v_pk_mul_f32 v[{a}:{a+1}], v[{a}:{a+1}], v[{w}:{w+1}]")
            A(f"v_pk_fma_f32 v[{a}:{a+1}], v[{a+2}:{a+3}], v[{w+2}:{w+3}], v[{a}:{a+1}]")
            A(f"v_add_f32 v{(88+t) if compute in (9,10,11) else a}, v{a}, v{a+1}")
            if compute == 1: A(f"ds_add_f32 v61, v{a} offset:{64*t}")
            elif compute in (2, 4): A(f"ds_write_b32 v61, v{a} offset:{64*t}")
            elif compute == 3: A(f"ds_add_u32 v61, v{a} offset:{64*t}")
        for i in range(8): A(f"v_mov_b64 v[{8+2*i}:{9+2*i}], 0")
        if compute in (9, 10, 11): A("s_mov_b32 s43, 1")
        A(f"{name}_nf{fl[0]}:")
    A("s_mov_b32 s35, 0")
    if lds: A("s_mov_b32 s34, s30")
    for i in range(D):
        rdkeys(i*32)
        A("s_waitcnt lgkmcnt(0)")
        issue(i); adv()
    A(f"v_add_u32 v2, {D*32}, v2")
    A(f"s_sub_u32 s22, s22, {D}")
    if lds:
        A(f"{name}_loop:")
        rdkeys(0)
        coef_reads()
        A("s_waitcnt lgkmcnt(0)")
        coef_math()
        A(f"s_waitcnt vmcnt({(D-1)*4})")
        if compute == 11:
            A("s_cmp_eq_u32 s43, 0")
            A(f"s_cbranch_scc1 {name}_nw")
            A("ds_write_b128 v92, v[88:91]")
            A("s_mov_b32 s43, 0")
            A(f"{name}_nw:")
        trreads()
        if compute == 10: A("s_waitcnt lgkmcnt(0)")
        if compute in (9, 10):
            A("s_cmp_eq_u32 s43, 0")
            A(f"s_cbranch_scc1 {name}_nw")
            for t in range(4): A(f"ds_write_b32 v61, v{88+t} offset:{64*t}")
            A("s_mov_b32 s43, 0")
            A(f"{name}_nw:")
        if compute != 10: A("s_waitcnt lgkmcnt(0)")
        if kq:
            A("s_mov_b32 s45, s44")
            A(f"{name}_dl:")
            A("s_cmp_eq_u32 s45, 0")
            A(f"s_cbranch_scc1 {name}_dn")
            A("s_sub_u32 s45, s45, 1")
            A(f"s_branch {name}_dl")
            A(f"{name}_dn:")
        issue(0)
        mm(0)
        flush()
        adv()
        A(f"v_add_u32 v2, 32, v2")
        A("s_sub_u32 s22, s22, 1")
        A("s_cmp_lg_u32 s22, 0")
        A(f"s_cbranch_scc1 {name}_loop")
        for i in range(D):
            coef_reads()
            A("s_waitcnt lgkmcnt(0)")
            coef_math()
            A(f"s_waitcnt vmcnt({(D-1-i)*4})")
            trreads()
            A("s_waitcnt lgkmcnt(0)")
            mm(0); flush(); adv()
        nv = 96
    else:
        NB = D + 1
        A(f"{name}_loop:")
        for b in range(NB):
            rdkeys(0)
            coef_reads()
            A("s_waitcnt lgkmcnt(0)")
            coef_math()
            A(f"s_waitcnt vmcnt({(D-1)*4})")
            issue((b + D) % NB)
            mm(b)
            flush()
            A(f"v_add_u32 v2, 32, v2")
            A("s_sub_u32 s22, s22, 1")
            A("s_cmp_eq_u32 s22, 0")
            A(f"s_cbranch_scc1 {name}_done")
        A(f"s_branch {name}_loop")
        A(f"{name}_done:")
        for i in range(D):
            coef_reads()
            A("s_waitcnt lgkmcnt(0)")
            coef_math()
            A(f"s_waitcnt vmcnt({(D-1-i)*4})")
            mm(i); flush()
        nv = BUF + 16 * NB
    A("s_waitcnt vmcnt(0)")
    A("s_memrealtime s[24:25]")
    A("s_memtime s[26:27]")
    A("s_nop 7\ns_nop 7")
    for i in range(1, 16): A(f"v_xor_b32 v8, v8, v{8+i}")
    A("s_waitcnt lgkmcnt(0)")
    A("s_sub_u32 s26, s26, s28")
    A("v_mov_b32 v12, s20\nv_mov_b32 v13, s24\nv_mov_b32 v14, v8\nv_mov_b32 v15, s26")
    A("v_lshrrev_b32 v2, 6, v0")
    A(f"s_mul_i32 s3, s2, {W}")
    A("v_add_u32 v2, s3, v2")
    A("v_lshlrev_b32 v2, 4, v2")
    A("v_and_b32 v3, 63, v0")
    A("v_cmp_eq_u32 vcc, 0, v3")
    A("s_and_saveexec_b64 s[26:27], vcc")
    A("buffer_store_dwordx4 v[12:15], v2, s[12:15], 0 offen")
    A("s_endpgm")
    kd = f""".section .rodata,"a"
.p2align 6
.amdhsa_kernel {name}
  .amdhsa_next_free_vgpr {nv}
  .amdhsa_next_free_sgpr 48
  .amdhsa_accum_offset {(nv+3)//4*4}
  .amdhsa_kernarg_size 24
  .amdhsa_user_sgpr_count 2
  .amdhsa_user_sgpr_kernarg_segment_ptr 1
  .amdhsa_system_sgpr_workgroup_id_x 1
.end_amdhsa_kernel
.text
"""
    return "\n".join(L) + "\n" + kd, nv, TOT

cfgs = [(14,33)]
txt = '.amdgcn_target "amdgcn-amd-amdhsa--gfx950"\n.text\n'
ks = []; info = []
G = 256
for (W, steps) in cfgs:
    name = f"w_{W}"
    t, nv, lds = gen(name, 'lds', W, 1, steps, 10000, 0.0, 8)
    txt += t; ks.append((name, nv)); info.append((name, W, 1, steps, lds))
co = assemble(txt, f"gb20_gen", ks, 24)
if not os.path.exists('/dev/kfd'): raise SystemExit("assembled only")
tab = DeviceBuffer.from_numpy(((np.random.randn(10000*256)*0.1).astype(np.float32).view(np.uint32) >> 16).astype(np.uint16))
st = DeviceBuffer(1 << 24)
idxb = DeviceBuffer(1 << 24)
big = DeviceBuffer(512 << 20)
small = DeviceBuffer(64 << 20)
m = Module(co)
cache = {}
name, W, D, steps, lds = info[0]
O1 = [(0,0),(1,0),(2,0),(0,1),(1,1),(2,1)]
V = eval(sys.argv[1])
bufs = {}
for v in V:
    idx, mx, real = make_idx_thr(steps, v[0], O1, v[1], rnd=v[2]) if v[1] >= 0 else make_idx_sorted(steps, v[0]); assert real == 640000, (mx, real)
    b = DeviceBuffer(1 << 24); upload(b, idx); bufs[v] = b
R = {k: [] for k in bufs}
rs = np.random.default_rng(0)
for it in range(300):
    for vi in rs.permutation(len(V)):
        v = V[vi]
        memset(small, it)
        m.launch(name, G, W*64, [tab.ptr, st.ptr, bufs[v].ptr], lds=max(lds, 82000)); sync()
        a = st.to_numpy(np.uint32, (G*W, 4))
        s_, e = a[:, 0].astype(np.int64), a[:, 1].astype(np.int64)
        cyc = a[:, 3].reshape(G, W).max(axis=1)
        dur = (e.reshape(G, W).max(axis=1) - s_.reshape(G, W).min(axis=1)) / 100.0
        R[v].append((np.median(cyc), cyc.max(), np.median(dur), dur.max()))
for k, v in R.items():
    r = np.median(np.array(v[5:]), axis=0)
    print(k, f"medcyc {r[0]:.0f} maxcyc {r[1]:.0f} med {r[2]:.2f} us max {r[3]:.2f} us  clk {r[0]/r[2]/1000:.3f}")
```

```python
import numpy as np
def make_idx(W, D, steps, P, B, G=256, N=10000, seed=0):
    rng = np.random.default_rng(seed)
    E = 640000
    dst = rng.integers(0, N, E); src = rng.integers(0, N, E)
    if P == 0:
        P = 1; B = 1; src = src // 2
    key = dst * B + (src * B) // N
    o = np.argsort(key, kind='stable')
    src_s = src[o]; cnt = np.bincount(dst, minlength=N); st = np.concatenate([[0], np.cumsum(cnt)])
    out = np.full((G, W, steps + D, 8), 0xFFFF, dtype=np.uint32)
    mx = 0; real = 0
    for b in range(G):
        n0 = (b * 625 + 15) >> 4; n1 = ((b + 1) * 625 + 15) >> 4
        ph = [[] for _ in range(P)]
        for n in range(n0, n1):
            s = src_s[st[n]:st[n+1]]
            S = (len(s) + 7) // 8
            pad = np.full(S * 8, 0xFFFF, dtype=np.uint32); pad[:len(s)] = s
            pad = pad.reshape(S, 8)
            for sg in range(S):
                p = min(P - 1, (sg * P + (n % P)) // S) if P > 1 else 0
                ph[p].append(pad[sg])
        wl = [[] for _ in range(W)]
        cum = 0
        tot = sum(len(x) for x in ph)
        for p in range(P):
            Lp = len(ph[p])
            for w in range(W):
                ww = (w + p * 3) % W
                a = Lp * w // W; e = Lp * (w + 1) // W
                wl[ww] += ph[p][a:e]
        g = (b % 32) * 8 + b // 32
        for w in range(W):
            k = min(len(wl[w]), steps)
            mx = max(mx, len(wl[w]))
            out[g, w, :k] = np.array(wl[w][:k])
            out[g, w, steps + D - 1, :] = k
    real = (out[:, :, :steps] != 0xFFFF).sum()
    return out, mx, real


def make_idx_static(W, D, steps, P, B, NPW, balance, G=256, N=10000, seed=0):
    rng = np.random.default_rng(seed)
    E = 640000
    dst = rng.integers(0, N, E); src = rng.integers(0, N, E)
    key = dst * B + (src * B) // N
    o = np.argsort(key, kind='stable')
    src_s = src[o]; cnt = np.bincount(dst, minlength=N); st = np.concatenate([[0], np.cumsum(cnt)])
    out = np.full((G, W, steps + D, 8), 0xFFFF, dtype=np.uint32)
    mx = 0
    for b in range(G):
        n0 = (b * 625 + 15) >> 4; n1 = ((b + 1) * 625 + 15) >> 4
        nodes = list(range(n0, n1))
        own = [[] for _ in range(W)]
        if balance == 0:
            for i, n in enumerate(nodes): own[i // NPW].append(n)
        elif balance == 1:
            nodes.sort(key=lambda n: -cnt[n])
            nn = len(nodes)
            WW = W
            if NPW == 3:
                WW = 13
                if nn == 40:
                    own[13].append(nodes[0]); nodes = nodes[1:]
                for i, n in enumerate(nodes):
                    r, c = divmod(i, WW)
                    if r == 0: w = c
                    elif r == 1: w = (c + 7) % 13
                    else:
                        w = [x for x in range(13) if 18 - x - ((x + 6) % 13) == c][0]
                    own[w].append(n)
            else:
                for i, n in enumerate(nodes):
                    r, c = divmod(i, WW)
                    own[c if r % 2 == 0 else WW - 1 - c].append(n)
        else:
            nodes.sort(key=lambda n: -cnt[n])
            load = [0] * W
            for n in nodes:
                w = min((x for x in range(W) if len(own[x]) < NPW), key=lambda x: load[x])
                own[w].append(n); load[w] += (cnt[n] + 7) // 8
        g = (b % 32) * 8 + b // 32
        for w in range(W):
            ph = [[] for _ in range(P)]
            for n in own[w]:
                s = src_s[st[n]:st[n+1]]
                S = (len(s) + 7) // 8
                pad = np.full(S * 8, 0xFFFF, dtype=np.uint32); pad[:len(s)] = s
                pad = pad.reshape(S, 8)
                for sg in range(S):
                    p = min(P - 1, (sg * P + (n % P)) // S) if P > 1 else 0
                    ph[p].append(pad[sg])
            wl = sum(ph, [])
            mx = max(mx, len(wl))
            k = min(len(wl), steps)
            if k: out[g, w, :k] = np.array(wl[:k])
            out[g, w, steps + D - 1, :] = max(k, D + 1)
    real = (out[:, :, :steps] != 0xFFFF).sum()
    return out, mx, real

_cache = {}
def make_idx_thr(steps, thr, order, balance, G=256, N=10000, seed=0, rnd=4):
    W = 14; D = 1
    if 'g' not in _cache:
        rng = np.random.default_rng(seed)
        E = 640000
        dst = rng.integers(0, N, E); src = rng.integers(0, N, E)
        o = np.argsort(dst, kind='stable')
        cnt = np.bincount(dst, minlength=N)
        _cache['g'] = (src[o], cnt, np.concatenate([[0], np.cumsum(cnt)]))
    src_s, cnt, st = _cache['g']
    out = np.full((G, W, steps + D, 8), 0xFFFF, dtype=np.uint32)
    mx = 0
    for b in range(G):
        n0 = (b * 625 + 15) >> 4; n1 = ((b + 1) * 625 + 15) >> 4
        cls = [[n0 + 3 * w + a for w in range(13)] for a in range(3)]
        if balance:
            key = (lambda n: -cnt[n]) if balance == 1 else (lambda n: -min(max((cnt[n] + 7) // 8, 7), 10))
            cls = [sorted(c, key=key) for c in cls]
            own = [[cls[0][w], cls[1][(w + 6) % 13], cls[2][18 - w - (w + 6) % 13]] for w in range(13)]
        else:
            own = [[cls[a][w] for a in range(3)] for w in range(13)]
        own.append([n0 + 39] if n1 - n0 == 40 else [])
        g = (b % 32) * 8 + b // 32
        for w in range(W):
            seg = {}
            for a, n in enumerate(own[w]):
                s = src_s[st[n]:st[n+1]]
                lo = s[s < thr[a] * N]; hi = s[s >= thr[a] * N]
                S = (len(s) + 7) // 8
                pad = np.full(S * 8, 0xFFFF, dtype=np.uint32); pad[:len(s)] = np.concatenate([lo, hi])
                pad = pad.reshape(S, 8); S0 = (len(lo) + rnd) // 8
                seg[(a, 0)] = list(pad[:S0]); seg[(a, 1)] = list(pad[S0:])
            wl = sum((seg.get(k, []) for k in order), [])
            mx = max(mx, len(wl)); k = min(len(wl), steps)
            if k: out[g, w, :k] = np.array(wl[:k])
            out[g, w, steps + D - 1, :] = max(k, D + 1)
    return out, mx, (out[:, :, :steps] != 0xFFFF).sum()

def make_idx_s2(steps, thr, G=256, N=10000, seed=0, bal=1):
    W = 14; D = 1
    if 'g' not in _cache: make_idx_thr(33, (.5, .5, .5), [(0, 0)], 0)
    src_s, cnt, st = _cache['g']
    out = np.full((G, W, steps + D, 8), 0xFFFF, dtype=np.uint32)
    mx = 0
    for g in range(G):
        x = g % 8; half = x >> 2; grp = (x & 3) * 32 + g // 8
        n0 = (grp * 625 + 7) >> 3; n1 = ((grp + 1) * 625 + 7) >> 3
        L = {}
        for n in range(n0, n1):
            s = src_s[st[n]:st[n+1]]
            L[n] = s[(s >= N // 2) == bool(half)]
        nodes = sorted(L, key=lambda n: -len(L[n]))
        own = [[] for _ in range(W)]; load = [0] * 13
        if len(nodes) > 78:
            own[13] = nodes[:len(nodes) - 78]; nodes = nodes[len(nodes) - 78:]
        if bal == 1:
            for n in nodes:
                w = min((x_ for x_ in range(13) if len(own[x_]) < 6), key=lambda x_: load[x_])
                own[w].append(n); load[w] += (len(L[n]) + 7) // 8
        else:
            nodes = sorted(nodes); pr = [(nodes[i], nodes[39 + i]) for i in range(39)]
            cls = [sorted(pr[a::3], key=lambda p: -((len(L[p[0]]) + 7) // 8 + (len(L[p[1]]) + 7) // 8)) for a in range(3)]
            for w in range(13):
                t = [cls[0][w], cls[1][(w + 6) % 13], cls[2][18 - w - (w + 6) % 13]]
                own[w] = [p[0] for p in t] + [p[1] for p in t]
        for w in range(W):
            first = []; rest = []
            for a, n in enumerate(own[w]):
                s = L[n]; S = (len(s) + 7) // 8
                if a < len(thr):
                    t = half * N // 2 + thr[a] * N // 2
                    lo = s[s < t]; s = np.concatenate([lo, s[s >= t]]); S0 = (len(lo) + 4) // 8
                else: S0 = 0
                pad = np.full(S * 8, 0xFFFF, dtype=np.uint32); pad[:len(s)] = s; pad = pad.reshape(S, 8)
                first += list(pad[:S0]); rest += list(pad[S0:])
            wl = first + rest
            mx = max(mx, len(wl)); k = min(len(wl), steps)
            if k: out[g, w, :k] = np.array(wl[:k])
            out[g, w, steps + D - 1, :] = max(k, D + 1)
    return out, mx, (out[:, :, :steps] != 0xFFFF).sum()

def make_idx_sorted(steps, P, G=256, N=10000, first=0):
    W = 14; D = 1
    if 'g' not in _cache: make_idx_thr(33, (.5, .5, .5), [(0, 0)], 0)
    src_s, cnt, st = _cache['g']
    out = np.full((G, W, steps + D, 8), 0xFFFF, dtype=np.uint32); mx = 0
    for b in range(G):
        n0 = (b * 625 + 15) >> 4; n1 = ((b + 1) * 625 + 15) >> 4
        cls = [sorted([n0 + 3 * w + a for w in range(13)], key=lambda n: -cnt[n]) for a in range(3)]
        own = [[cls[0][w], cls[1][(w + 6) % 13], cls[2][18 - w - (w + 6) % 13]] for w in range(13)]
        own.append([n0 + 39] if n1 - n0 == 40 else [])
        g = (b % 32) * 8 + b // 32
        for w in range(W):
            items = []
            for a, n in enumerate(own[w]):
                s = np.sort(src_s[st[n]:st[n+1]]); S = (len(s) + 7) // 8
                pad = np.full(S * 8, 0xFFFF, dtype=np.uint32); pad[:len(s)] = s; pad = pad.reshape(S, 8)
                for sg in range(S):
                    key = (pad[sg][0], a) if P == 0 else (min(P - 1, (sg * P + a * P // 3) // S), a, sg)
                    items.append((key, pad[sg]))
            items.sort(key=lambda t: t[0]); wl = [t[1] for t in items]
            mx = max(mx, len(wl)); k = min(len(wl), steps)
            if k: out[g, w, :k] = np.array(wl[:k])
            out[g, w, steps + D - 1, :] = max(k, D + 1)
    return out, mx, (out[:, :, :steps] != 0xFFFF).sum()

def make_idx_ts(steps, thr, B, mode, G=256, N=10000):
    W = 14; D = 1
    if 'g' not in _cache: make_idx_thr(33, (.5, .5, .5), [(0, 0)], 0)
    src_s, cnt, st = _cache['g']
    out = np.full((G, W, steps + D, 8), 0xFFFF, dtype=np.uint32); mx = 0
    bs = lambda s: s[np.argsort(s * B // N, kind='stable')]
    for b in range(G):
        n0 = (b * 625 + 15) >> 4; n1 = ((b + 1) * 625 + 15) >> 4
        cls = [sorted([n0 + 3 * w + a for w in range(13)], key=lambda n: -cnt[n]) for a in range(3)]
        own = [[cls[0][w], cls[1][(w + 6) % 13], cls[2][18 - w - (w + 6) % 13]] for w in range(13)]
        own.append([n0 + 39] if n1 - n0 == 40 else [])
        g = (b % 32) * 8 + b // 32
        for w in range(W):
            lo_l = []; hi_l = []
            for a, n in enumerate(own[w]):
                s = src_s[st[n]:st[n+1]]
                lo = s[s < thr[a] * N]; s = np.concatenate([lo, s[s >= thr[a] * N]])
                S = (len(s) + 7) // 8; S0 = (len(lo) + 4) // 8
                if mode >= 4:
                    if a < mode - 3: s = np.concatenate([bs(s[:8 * S0]), s[8 * S0:]])
                else:
                    keep = 0 if a or mode == 0 else {1: 8, 2: 8 * S0, 3: 16}[mode]
                    s = np.concatenate([s[:keep], bs(s[keep:])])
                pad = np.full(S * 8, 0xFFFF, dtype=np.uint32); pad[:len(s)] = s; pad = pad.reshape(S, 8)
                lo_l += list(pad[:S0]); hi_l += list(pad[S0:])
            wl = lo_l + hi_l
            mx = max(mx, len(wl)); k = min(len(wl), steps)
            if k: out[g, w, :k] = np.array(wl[:k])
            out[g, w, steps + D - 1, :] = max(k, D + 1)
    return out, mx, (out[:, :, :steps] != 0xFFFF).sum()

def make_idx_bk(steps, bounds, split, G=256, N=10000):
    W = 14; D = 1
    if 'g' not in _cache: make_idx_thr(33, (.5, .5, .5), [(0, 0)], 0)
    src_s, cnt, st = _cache['g']
    out = np.full((G, W, steps + D, 8), 0xFFFF, dtype=np.uint32); mx = 0
    for b in range(G):
        n0 = (b * 625 + 15) >> 4; n1 = ((b + 1) * 625 + 15) >> 4
        cls = [sorted([n0 + 3 * w + a for w in range(13)], key=lambda n: -cnt[n]) for a in range(3)]
        own = [[cls[0][w], cls[1][(w + 6) % 13], cls[2][18 - w - (w + 6) % 13]] for w in range(13)]
        own.append([n0 + 39] if n1 - n0 == 40 else [])
        g = (b % 32) * 8 + b // 32
        for w in range(W):
            P = len(split[0]) + 1; ph = [[] for _ in range(P)]
            for a, n in enumerate(own[w]):
                s = src_s[st[n]:st[n+1]]
                bk = np.searchsorted(np.array(bounds[a]) * N, s, side='right')
                o = np.argsort(bk, kind='stable'); s = s[o]; bk = bk[o]
                S = (len(s) + 7) // 8
                pad = np.full(S * 8, 0xFFFF, dtype=np.uint32); pad[:len(s)] = s; pad = pad.reshape(S, 8)
                cut = [0] + [((bk < k).sum() + 4) // 8 for k in split[a]] + [S]
                for p in range(P): ph[p] += list(pad[cut[p]:cut[p+1]])
            wl = sum(ph, [])
            mx = max(mx, len(wl)); k = min(len(wl), steps)
            if k: out[g, w, :k] = np.array(wl[:k])
            out[g, w, steps + D - 1, :] = max(k, D + 1)
    return out, mx, (out[:, :, :steps] != 0xFFFF).sum()
```

```python
import sys, itertools
import numpy as np
from bl import *
from mk import *

def gen(name, mode, W, D, steps, nrows, pfrac, compute=True, ref=0, kq=0):
    L = []
    A = L.append
    lds = mode == 'lds'
    RING = W * D * 4224 if lds else 0
    IDX0 = RING
    nidx = W * (steps + D) * 8
    PAY0 = IDX0 + nidx * 4 + W * 64 * 4
    AGG0 = PAY0 + nidx * 16
    TOT = AGG0 + (0 if compute == 8 else 40960)
    A(f".globl {name}\n.p2align 8\n.type {name},@function\n{name}:")
    A("s_load_dwordx4 s[4:7], s[0:1], 0")
    A("s_load_dwordx2 s[32:33], s[0:1], 16")
    A("v_lshrrev_b32 v5, 6, v0")
    A("s_nop 0")
    A("v_readfirstlane_b32 s31, v5")
    A("v_and_b32 v5, 63, v0")
    if lds:
        A("v_and_b32 v1, 31, v0")
        A("v_lshrrev_b32 v6, 2, v1")
        A("v_and_b32 v6, 4, v6")
        A("v_xor_b32 v1, v1, v6")
        A("v_lshlrev_b32 v1, 4, v1")
        A(f"s_mul_i32 s30, s31, {D*4224}")
        A("v_lshrrev_b32 v24, 4, v5")
        A("v_mul_u32_u24 v24, 1056, v24")
        A("v_bfe_u32 v25, v5, 2, 2")
        A("v_lshlrev_b32 v26, 7, v25")
        A("v_add_u32 v24, v24, v26")
        A("v_and_b32 v26, 3, v5")
        A("v_lshl_add_u32 v24, v26, 3, v24")
        A("v_add_u32 v24, s30, v24")
        A("v_lshrrev_b32 v25, 1, v25")
        A("v_lshlrev_b32 v25, 6, v25")
        A("v_add_u32 v26, v24, v25")
        A("v_xor_b32 v25, 64, v25")
        A("v_add_u32 v27, v24, v25")
    else:
        A("v_and_b32 v1, 15, v0")
        A("v_lshlrev_b32 v1, 4, v1")
    A("s_waitcnt lgkmcnt(0)")
    A("s_mov_b32 s8, s4\ns_and_b32 s9, s5, 0xffff\ns_mov_b32 s10, %d\ns_mov_b32 s11, 0x20000" % (nrows*512))
    A("s_mov_b32 s12, s6\ns_and_b32 s13, s7, 0xffff\ns_mov_b32 s14, 0x1000000\ns_mov_b32 s15, 0x20000")
    A("s_mov_b32 s36, s32\ns_and_b32 s37, s33, 0xffff\ns_mov_b32 s38, 0x1000000\ns_mov_b32 s39, 0x20000")
    for i in range(16): A(f"v_mov_b32 v{8+i}, 0")
    A("v_lshlrev_b32 v6, 4, v5")
    A("buffer_load_dwordx2 v[54:55], v6, s[8:11], 0 offen")
    for i in range(4): A(f"buffer_load_dwordx4 v[{64+4*i}:{67+4*i}], v6, s[8:11], 0 offen offset:{1024*i}")
    A(f"s_mul_i32 s3, s2, {nidx*4}")
    A("v_lshlrev_b32 v5, 2, v0")
    for k in range((nidx + W*64 - 1) // (W*64)):
        A(f"buffer_load_dword v6, v5, s[36:39], s3 offen")
        A(f"v_lshlrev_b32 v7, 2, v5")
        A("v_mov_b32 v56, 0x3c803d00\nv_mov_b32 v57, 0xbd203c40\nv_xor_b32 v58, v56, v7\nv_and_b32 v58, 0x807f807f, v58\nv_or_b32 v58, 0x3c003c00, v58\nv_mov_b32 v59, v58")
        A(f"v_add_u32 v60, {PAY0}, v7")
        A(f"v_add_u32 v7, {IDX0}, v5")
        A("s_waitcnt vmcnt(0)")
        A("ds_write_b32 v7, v6")
        A(f"v_cmp_gt_u32 vcc, {AGG0}, v60")
        A("s_and_saveexec_b64 s[26:27], vcc")
        A("ds_write_b128 v60, v[56:59]")
        A("s_mov_b64 exec, s[26:27]")
        A(f"v_add_u32 v5, {W*64*4}, v5")
    A(f"s_mul_i32 s3, s31, {(steps+D)*32}")
    A(f"s_add_u32 s40, s3, {IDX0}")
    if lds:
        A("v_bfe_u32 v2, v0, 5, 1")
        A("v_lshlrev_b32 v2, 4, v2")
    else:
        A("v_bfe_u32 v2, v0, 4, 2")
        A("v_lshlrev_b32 v2, 3, v2")
    A("v_add_u32 v2, s40, v2")
    A("s_lshl_b32 s3, s3, 2")
    A(f"s_add_u32 s3, s3, {PAY0}")
    A("v_bfe_u32 v4, v0, 4, 2")
    A(f"v_lshlrev_b32 v4, {4 if lds else 5}, v4")
    A("v_add_u32 v4, s3, v4")
    A("v_and_b32 v7, 3, v0")
    A("v_lshl_add_u32 v7, v7, 1, v4")
    hoff = 64 if lds else 16
    A("v_and_b32 v61, 63, v0")
    A("v_bfe_u32 v62, v0, 4, 2")
    A("v_and_b32 v61, 15, v61")
    A("v_lshlrev_b32 v61, 2, v61")
    A("v_lshl_add_u32 v61, v62, 8, v61")
    A(f"s_mul_i32 s3, s31, 2048")
    A(f"s_add_u32 s3, s3, {AGG0}")
    A("v_add_u32 v61, s3, v61")
    A("v_mov_b32 v62, 0\nv_mov_b32 v63, 0")
    for i in range(4): A(f"v_mov_b32 v{28+i}, " + ("0" if compute == 6 else f"v{64+i}"))
    if pfrac > 0:
        per = int(nrows * pfrac) * 512 // 32 // 128 * 128
        A(f"s_lshr_b32 s3, s2, 3")
        A(f"s_mul_i32 s3, s3, {per}")
        A(f"v_lshlrev_b32 v5, 7, v0")
        n = (per + W*64*128 - 1) // (W*64*128)
        for k in range(n):
            A(f"v_cmp_gt_u32 vcc, {per}, v5")
            A("s_and_saveexec_b64 s[26:27], vcc")
            A(f"buffer_load_dword v{32+k%8}, v5, s[8:11], s3 offen")
            A("s_mov_b64 exec, s[26:27]")
            A(f"v_add_u32 v5, {W*64*128}, v5")
    A("s_waitcnt vmcnt(0) lgkmcnt(0)")
    A("s_barrier")
    A("s_memrealtime s[20:21]")
    A("s_memtime s[28:29]")
    A("s_waitcnt lgkmcnt(0)")
    A("v_mov_b32 v3, s40")
    A(f"ds_read_b32 v3, v3 offset:{(steps+D)*32-32}")
    A("s_waitcnt lgkmcnt(0)")
    A("v_readfirstlane_b32 s22, v3")
    A("s_mov_b32 s41, 0")
    A(f"s_sub_i32 s44, {ref}, s22")
    A("s_max_i32 s44, s44, 0")
    A(f"s_mul_i32 s44, s44, {kq}")
    A("s_mov_b32 s43, 0")
    A("v_and_b32 v92, 63, v0")
    A("v_lshlrev_b32 v92, 4, v92")
    A(f"s_mul_i32 s3, s31, 2048")
    A(f"s_add_u32 s3, s3, {AGG0}")
    A("v_add_u32 v92, s3, v92")
    BUF = 80
    def rdkeys(off):
        if lds: A(f"ds_read_b128 v[48:51], v2 offset:{off}")
        else: A(f"ds_read_b64 v[48:49], v2 offset:{off}")
    def issue(b):
        if lds:
            for k in range(4):
                A(f"s_add_u32 m0, s34, {k*1056}")
                A(f"v_lshl_add_u32 v3, v{48+k}, 9, v1")
                A(f"buffer_load_dwordx4 v3, s[8:11], 0 offen lds")
        else:
            r = BUF + 16 * b
            A(f"v_lshl_add_u32 v3, v48, 9, v1")
            A(f"v_lshl_add_u32 v5, v49, 9, v1")
            A(f"buffer_load_dwordx4 v[{r}:{r+3}], v3, s[8:11], 0 offen")
            A(f"buffer_load_dwordx4 v[{r+8}:{r+11}], v3, s[8:11], 0 offen offset:256")
            A(f"buffer_load_dwordx4 v[{r+4}:{r+7}], v5, s[8:11], 0 offen")
            A(f"buffer_load_dwordx4 v[{r+12}:{r+15}], v5, s[8:11], 0 offen offset:256")
    def adv():
        if lds and D > 1:
            A(f"s_add_u32 s35, s35, 4224")
            A(f"s_cmp_eq_u32 s35, {D*4224}")
            A(f"s_cselect_b32 s35, 0, s35")
            A(f"s_add_u32 s34, s35, s30")
    def coef_reads():
        if compute in (0, 5, 6): return
        A(f"ds_read_b64 v[56:57], v4")
        A(f"ds_read_b64 v[58:59], v4 offset:{hoff}")
        A(f"ds_read_u16_d16_hi v62, v7 offset:8")
        A(f"ds_read_u16_d16_hi v63, v7 offset:{hoff+8}")
        A("v_add_u32 v4, 128, v4")
        A("v_add_u32 v7, 128, v7")
    def coef_math():
        if compute in (0, 5, 6, 7): return
        c = 80 if lds else 40
        A(f"v_mfma_f32_4x4x4_16b_bf16 v[{c}:{c+3}], v[54:55], v[56:57], 0")
        A(f"v_mfma_f32_4x4x4_16b_bf16 v[{c+4}:{c+7}], v[54:55], v[58:59], 0")
        A("s_nop 3")
        A(f"v_pk_mul_f32 v[{c}:{c+1}], v[{c}:{c+1}], v[62:63] op_sel_hi:[1,0]")
        A(f"v_pk_mul_f32 v[{c+2}:{c+3}], v[{c+2}:{c+3}], v[62:63] op_sel_hi:[1,0]")
        A(f"v_pk_mul_f32 v[{c+4}:{c+5}], v[{c+4}:{c+5}], v[62:63] op_sel:[0,1]")
        A(f"v_pk_mul_f32 v[{c+6}:{c+7}], v[{c+6}:{c+7}], v[62:63] op_sel:[0,1]")
        for i in range(4): A(f"v_cvt_pk_bf16_f32 v{28+i}, v{c+2*i}, v{c+2*i+1}")
    def trreads():
        if D > 1:
            A("v_add_u32 v52, s35, v26")
            A("v_add_u32 v53, s35, v27")
        for t in range(4):
            for h in range(2):
                A(f"ds_read_b64_tr_b16 v[{32+4*t+2*h}:{32+4*t+2*h+1}], v{(52 if D > 1 else 26) + (t>>1)} offset:{h*512 + (t&1)*32}")
    def mm(b):
        if compute in (0, 4, 7): return
        if lds:
            for t in range(4):
                A(f"v_mfma_f32_16x16x32_bf16 v[{8+4*t}:{8+4*t+3}], v[28:31], v[{32+4*t}:{32+4*t+3}], v[{8+4*t}:{8+4*t+3}]")
        elif mode == 'reg16':
            r = BUF + 16 * b
            for h in range(2):
                for t in range(4):
                    rr = r + 8*(t>>1) + 4*h + 2*(t&1)
                    A(f"v_mfma_f32_16x16x16_bf16 v[{8+4*t}:{8+4*t+3}], v[{28+2*h}:{29+2*h}], v[{rr}:{rr+1}], v[{8+4*t}:{8+4*t+3}]")
        else:
            r = BUF + 16 * b
            A(f"v_swap_b32 v{r+2}, v{r+4}\nv_swap_b32 v{r+3}, v{r+5}\nv_swap_b32 v{r+10}, v{r+12}\nv_swap_b32 v{r+11}, v{r+13}")
            A("s_nop 0")
            for t in range(4):
                A(f"v_mfma_f32_16x16x32_bf16 v[{8+4*t}:{8+4*t+3}], v[28:31], v[{r+4*t}:{r+4*t+3}], v[{8+4*t}:{8+4*t+3}]")
    fl = [0]
    def flush():
        if compute in (0, 5, 6, 7, 8): return
        fl[0] += 1
        A("s_add_u32 s41, s41, 1")
        A("s_and_b32 s42, s41, 3")
        A(f"s_cbranch_scc1 {name}_nf{fl[0]}")
        A("s_nop 4")
        for t in range(4):
            a = 8 + 4*t; w = 64 + 4*t
            A(f"v_pk_mul_f32 v[{a}:{a+1}], v[{a}:{a+1}], v[{w}:{w+1}]")
            A(f"v_pk_fma_f32 v[{a}:{a+1}], v[{a+2}:{a+3}], v[{w+2}:{w+3}], v[{a}:{a+1}]")
            A(f"v_add_f32 v{(88+t) if compute in (9,10,11) else a}, v{a}, v{a+1}")
            if compute == 1: A(f"ds_add_f32 v61, v{a} offset:{64*t}")
            elif compute in (2, 4): A(f"ds_write_b32 v61, v{a} offset:{64*t}")
            elif compute == 3: A(f"ds_add_u32 v61, v{a} offset:{64*t}")
        for i in range(8): A(f"v_mov_b64 v[{8+2*i}:{9+2*i}], 0")
        if compute in (9, 10, 11): A("s_mov_b32 s43, 1")
        A(f"{name}_nf{fl[0]}:")
    A("s_mov_b32 s35, 0")
    if lds: A("s_mov_b32 s34, s30")
    for i in range(D):
        rdkeys(i*32)
        A("s_waitcnt lgkmcnt(0)")
        issue(i); adv()
    A(f"v_add_u32 v2, {D*32}, v2")
    A(f"s_sub_u32 s22, s22, {D}")
    if lds:
        A(f"{name}_loop:")
        rdkeys(0)
        coef_reads()
        A("s_waitcnt lgkmcnt(0)")
        coef_math()
        A(f"s_waitcnt vmcnt({(D-1)*4})")
        if compute == 11:
            A("s_cmp_eq_u32 s43, 0")
            A(f"s_cbranch_scc1 {name}_nw")
            A("ds_write_b128 v92, v[88:91]")
            A("s_mov_b32 s43, 0")
            A(f"{name}_nw:")
        trreads()
        if compute == 10: A("s_waitcnt lgkmcnt(0)")
        if compute in (9, 10):
            A("s_cmp_eq_u32 s43, 0")
            A(f"s_cbranch_scc1 {name}_nw")
            for t in range(4): A(f"ds_write_b32 v61, v{88+t} offset:{64*t}")
            A("s_mov_b32 s43, 0")
            A(f"{name}_nw:")
        if compute != 10: A("s_waitcnt lgkmcnt(0)")
        if kq:
            A("s_mov_b32 s45, s44")
            A(f"{name}_dl:")
            A("s_cmp_eq_u32 s45, 0")
            A(f"s_cbranch_scc1 {name}_dn")
            A("s_sub_u32 s45, s45, 1")
            A(f"s_branch {name}_dl")
            A(f"{name}_dn:")
        issue(0)
        mm(0)
        flush()
        adv()
        A(f"v_add_u32 v2, 32, v2")
        A("s_sub_u32 s22, s22, 1")
        A("s_cmp_lg_u32 s22, 0")
        A(f"s_cbranch_scc1 {name}_loop")
        for i in range(D):
            coef_reads()
            A("s_waitcnt lgkmcnt(0)")
            coef_math()
            A(f"s_waitcnt vmcnt({(D-1-i)*4})")
            trreads()
            A("s_waitcnt lgkmcnt(0)")
            mm(0); flush(); adv()
        nv = 96
    else:
        NB = D + 1
        A(f"{name}_loop:")
        for b in range(NB):
            rdkeys(0)
            coef_reads()
            A("s_waitcnt lgkmcnt(0)")
            coef_math()
            A(f"s_waitcnt vmcnt({(D-1)*4})")
            issue((b + D) % NB)
            mm(b)
            flush()
            A(f"v_add_u32 v2, 32, v2")
            A("s_sub_u32 s22, s22, 1")
            A("s_cmp_eq_u32 s22, 0")
            A(f"s_cbranch_scc1 {name}_done")
        A(f"s_branch {name}_loop")
        A(f"{name}_done:")
        for i in range(D):
            coef_reads()
            A("s_waitcnt lgkmcnt(0)")
            coef_math()
            A(f"s_waitcnt vmcnt({(D-1-i)*4})")
            mm(i); flush()
        nv = BUF + 16 * NB
    A("s_waitcnt vmcnt(0)")
    A("s_memrealtime s[24:25]")
    A("s_memtime s[26:27]")
    A("s_nop 7\ns_nop 7")
    for i in range(1, 16): A(f"v_xor_b32 v8, v8, v{8+i}")
    A("s_waitcnt lgkmcnt(0)")
    A("s_sub_u32 s26, s26, s28")
    A("v_mov_b32 v12, s20\nv_mov_b32 v13, s24\nv_mov_b32 v14, v8\nv_mov_b32 v15, s26")
    A("v_lshrrev_b32 v2, 6, v0")
    A(f"s_mul_i32 s3, s2, {W}")
    A("v_add_u32 v2, s3, v2")
    A("v_lshlrev_b32 v2, 4, v2")
    A("v_and_b32 v3, 63, v0")
    A("v_cmp_eq_u32 vcc, 0, v3")
    A("s_and_saveexec_b64 s[26:27], vcc")
    A("buffer_store_dwordx4 v[12:15], v2, s[12:15], 0 offen")
    A("s_endpgm")
    kd = f""".section .rodata,"a"
.p2align 6
.amdhsa_kernel {name}
  .amdhsa_next_free_vgpr {nv}
  .amdhsa_next_free_sgpr 48
  .amdhsa_accum_offset {(nv+3)//4*4}
  .amdhsa_kernarg_size 24
  .amdhsa_user_sgpr_count 2
  .amdhsa_user_sgpr_kernarg_segment_ptr 1
  .amdhsa_system_sgpr_workgroup_id_x 1
.end_amdhsa_kernel
.text
"""
    return "\n".join(L) + "\n" + kd, nv, TOT

cfgs = [(14,33)]
txt = '.amdgcn_target "amdgcn-amd-amdhsa--gfx950"\n.text\n'
ks = []; info = []
G = 256
for (W, steps) in cfgs:
    name = f"w_{W}"
    t, nv, lds = gen(name, 'lds', W, 1, steps, 10000, 0.0, 8)
    txt += t; ks.append((name, nv)); info.append((name, W, 1, steps, lds))
co = assemble(txt, f"gb22_gen", ks, 24)
if not os.path.exists('/dev/kfd'): raise SystemExit("assembled only")
tab = DeviceBuffer.from_numpy(((np.random.randn(10000*256)*0.1).astype(np.float32).view(np.uint32) >> 16).astype(np.uint16))
st = DeviceBuffer(1 << 24)
idxb = DeviceBuffer(1 << 24)
big = DeviceBuffer(512 << 20)
small = DeviceBuffer(64 << 20)
m = Module(co)
cache = {}
name, W, D, steps, lds = info[0]
O1 = [(0,0),(1,0),(2,0),(0,1),(1,1),(2,1)]
V = eval(sys.argv[1])
bufs = {}
for v in V:
    idx, mx, real = make_idx_thr(steps, v[0], O1, v[1], rnd=v[2]) if v[1] >= 0 else make_idx_bk(steps, v[0], v[2]); assert real == 640000, (mx, real)
    b = DeviceBuffer(1 << 24); upload(b, idx); bufs[v] = b
R = {k: [] for k in bufs}
rs = np.random.default_rng(0)
for it in range(300):
    for vi in rs.permutation(len(V)):
        v = V[vi]
        memset(small, it)
        m.launch(name, G, W*64, [tab.ptr, st.ptr, bufs[v].ptr], lds=max(lds, 82000)); sync()
        a = st.to_numpy(np.uint32, (G*W, 4))
        s_, e = a[:, 0].astype(np.int64), a[:, 1].astype(np.int64)
        cyc = a[:, 3].reshape(G, W).max(axis=1)
        dur = (e.reshape(G, W).max(axis=1) - s_.reshape(G, W).min(axis=1)) / 100.0
        R[v].append((np.median(cyc), cyc.max(), np.median(dur), dur.max()))
for k, v in R.items():
    r = np.median(np.array(v[5:]), axis=0)
    print(k, f"medcyc {r[0]:.0f} maxcyc {r[1]:.0f} med {r[2]:.2f} us max {r[3]:.2f} us  clk {r[0]/r[2]/1000:.3f}")
```
